```python
import torch

def _softmax(x, axis=-1):
    return torch.softmax(x, dim=axis)
def _gelu(x):
    return torch.nn.functional.gelu(x, approximate="tanh")
def _silu(x):
    return torch.nn.functional.silu(x)
def _sigmoid(x):
    return torch.sigmoid(x)
def _layernorm(x, axis=-1, eps=1e-5):
    m = x.mean(dim=axis, keepdim=True)
    v = x.var(dim=axis, keepdim=True, unbiased=False)
    return (x - m) / torch.sqrt(v + eps)
def _scatter_add(tgt, idx, src, axis=0):
    return tgt.clone().index_add_(axis, idx, src)
def _segment_sum(src, seg, n):
    out = torch.zeros((n,) + src.shape[1:], dtype=src.dtype)
    return out.index_add_(0, seg, src)
def _pad(x, pw):
    flat = tuple(v for pair in reversed(pw) for v in pair)
    return torch.nn.functional.pad(x, flat)

kernel_name = 'gated_mix__grouped_kv_mqa__mha_block__prompt'

def setup_inputs():

    _w = (lambda a: (lambda t: t.to(torch.bfloat16) if t.is_floating_point() else t)(torch.as_tensor(a)))
    def _A_setup():
        B, S, D, H = 1, 2048, 640, 32
        Dh = D // H
        return {
            "x": _w((lambda *s: torch.randn(*s, dtype=torch.bfloat16) * 0.1)(B, S, D)),
            "wq": _w((lambda *s: torch.randn(*s, dtype=torch.bfloat16) * 0.4)(D, H * Dh)),
            "wk": _w((lambda *s: torch.randn(*s, dtype=torch.bfloat16) * 0.4)(D, Dh)),
            "wv": _w((lambda *s: torch.randn(*s, dtype=torch.bfloat16) * 0.4)(D, Dh)),
            "wo": _w((lambda *s: torch.randn(*s, dtype=torch.bfloat16) * 0.4)(H * Dh, D)),
        }
    _A_in = _A_setup()

    def _B_setup():
        B, S, D, H = 1, 2048, 640, 32
        return {
            "x": _w((lambda *s: torch.randn(*s, dtype=torch.bfloat16) * 0.1)(B, S, D)),
            "wqkv": _w((lambda *s: torch.randn(*s, dtype=torch.bfloat16) * 0.4)(D, 3 * D)),
            "wo": _w((lambda *s: torch.randn(*s, dtype=torch.bfloat16) * 0.2)(D, D)),
        }
    _B_in = _B_setup()

    return {
        "A_x": _A_in["x"],
        "A_wq": _A_in["wq"],
        "A_wk": _A_in["wk"],
        "A_wv": _A_in["wv"],
        "A_wo": _A_in["wo"],
        "B_x": _B_in["x"],
        "B_wqkv": _B_in["wqkv"],
        "B_wo": _B_in["wo"],
        "gate_w": _w((lambda *s: torch.randn(*s, dtype=torch.bfloat16) * 0.1)(640) * 16.0),
    }

def reference(A_x, A_wq, A_wk, A_wv, A_wo, B_x, B_wqkv, B_wo, gate_w):
    def _A_ref(x, wq, wk, wv, wo):
        B, S, D = x.shape
        H = 32
        Dh = D // H
        q = (lambda x, *d: x.permute(*d))((x @ wq).reshape(B, S, H, Dh), 0, 2, 1, 3)
        k = x @ wk
        v = x @ wv
        scores = torch.einsum("bhqd,bkd->bhqk", q, k) * (Dh ** -0.5)
        p = _softmax(scores, axis=-1)
        o = torch.einsum("bhqk,bkd->bhqd", p, v)
        return (lambda x, *d: x.permute(*d))(o, 0, 2, 1, 3).reshape(B, S, H * Dh) @ wo

    def _B_ref(x, wqkv, wo):
        B, S, D = x.shape
        H = 32
        Dh = D // H
        qkv = (lambda x, *d: x.permute(*d))((x @ wqkv).reshape(B, S, 3, H, Dh), 2, 0, 3, 1, 4)
        q, k, v = qkv[0], qkv[1], qkv[2]
        scores = torch.einsum("bhqd,bhkd->bhqk", q, k) * (Dh ** -0.5)
        p = _softmax(scores, axis=-1)
        o = torch.einsum("bhqk,bhkd->bhqd", p, v)
        return (lambda x, *d: x.permute(*d))(o, 0, 2, 1, 3).reshape(B, S, D) @ wo

    x = A_x
    g = _sigmoid((x * gate_w).sum(-1, keepdims=True))
    a = _A_ref(x, A_wq, A_wk, A_wv, A_wo)
    b = _B_ref(x, B_wqkv, B_wo)
    return g * a + (1 - g) * b
```

```python
import re

REG_RE = re.compile(r'^(v|a|s)(\d+)$|^(v|a|s)\[(\d+):(\d+)\]$')
TRANS = ('v_exp_f32','v_log_f32','v_rcp_f32','v_rsq_f32','v_sqrt_f32','v_sin_f32','v_cos_f32','v_rcp_iflag_f32','v_exp_f16')

def regs_of(op):
    op = op.strip()
    neg = op.lstrip('-')
    if neg.startswith('abs(') or neg.startswith('|'):
        neg = neg.replace('abs(','').replace(')','').replace('|','')
    op = neg
    if op == 'vcc': return [('s',106),('s',107)]
    if op == 'vcc_lo': return [('s',106)]
    if op == 'vcc_hi': return [('s',107)]
    if op == 'exec': return [('s',126),('s',127)]
    if op == 'm0': return [('s',124)]
    m = REG_RE.match(op)
    if not m: return []
    if m.group(1): return [(m.group(1), int(m.group(2)))]
    return [(m.group(3), i) for i in range(int(m.group(4)), int(m.group(5))+1)]

def split_ops(s):
    out=[];cur='';d=0
    for ch in s:
        if ch=='[': d+=1
        if ch==']': d-=1
        if ch==',' and d==0:
            out.append(cur.strip());cur=''
        else: cur+=ch
    if cur.strip(): out.append(cur.strip())
    return out

class Ins:
    __slots__=('text','mn','ops','mods','w','r','kind','passes','srcC','states','wide','cnt')
    def __init__(s,text):
        s.text=text
        t=text.split(';')[0].strip()
        parts=t.split(None,1)
        s.mn=parts[0]
        rest=parts[1] if len(parts)>1 else ''
        ops=split_ops(rest)
        mods=[]
        if ops:
            toks=ops[-1].split()
            ops[-1]=toks[0]; mods=toks[1:]
        s.ops=ops; s.mods=mods
        s.w=[];s.r=[];s.kind='salu';s.passes=0;s.srcC=[];s.states=1;s.wide=False;s.cnt=None
        mn=s.mn
        R=lambda i: regs_of(ops[i]) if i<len(ops) else []
        allr=lambda a: [x for i in range(a,len(ops)) for x in R(i)]
        if mn=='s_nop':
            s.states=int(ops[0],0)+1; s.kind='nop'
        elif mn=='s_waitcnt':
            s.kind='wait'
            s.cnt={}
            for k,v in re.findall(r'(vmcnt|lgkmcnt|expcnt)\((\d+)\)',t): s.cnt[k]=int(v)
        elif mn in('s_barrier','s_endpgm','s_setprio','s_branch','s_sleep') or mn.startswith('s_cbranch'):
            s.kind='ctl'
            if 'vcc' in mn: s.r=regs_of('vcc')
            if 'exec' in mn: s.r=regs_of('exec')
        elif mn.startswith('s_cmp') or mn.startswith('s_bitcmp'):
            s.r=allr(0)
        elif mn.startswith('s_load') or mn.startswith('s_memtime') or mn.startswith('s_memrealtime') or mn.startswith('s_buffer_load'):
            s.kind='smem'; s.w=R(0); s.r=allr(1)
        elif mn.startswith('s_'):
            s.w=R(0); s.r=allr(1)
            if 'saveexec' in mn: s.w+=regs_of('exec'); s.r+=regs_of('exec')
            if mn in('s_addk_i32','s_mulk_i32'): s.r+=R(0)
        elif mn.startswith('v_mfma'):
            s.kind='mfma'; s.w=R(0); s.r=R(1)+R(2)+R(3); s.srcC=R(3)
            s.passes=8 if '32x32' in mn else 4
        elif mn.startswith('v_'):
            s.kind='trans' if mn.replace('_e32','').replace('_e64','') in TRANS else 'valu'
            if 'permlane' in mn and 'swap' in mn:
                s.w=R(0)+R(1); s.r=R(0)+R(1)
            elif mn.startswith('v_cmp'):
                s.w=R(0); s.r=allr(1)
                if mn.startswith('v_cmpx'): s.w+=regs_of('exec')
            elif '_co_' in mn:
                s.w=R(0)+R(1); s.r=allr(2)
            else:
                s.w=R(0); s.r=allr(1)
                if mn.startswith('v_fmac') or mn.startswith('v_dot2c') or 'UNUSED_PRESERVE' in t or mn.startswith('v_writelane') or '_dpp' in mn: s.r+=R(0)
        elif mn.startswith('ds_'):
            s.kind='ds'
            if mn.startswith('ds_read') or 'permute' in mn or 'swizzle' in mn:
                s.w=R(0); s.r=allr(1)
            else:
                s.r=allr(0)
        elif mn.startswith('buffer_') or mn.startswith('global_'):
            s.kind='vmem'
            if 'load' in mn and 'lds' not in mods and 'load_lds' not in mn:
                s.w=R(0); s.r=allr(1)
            else:
                s.r=allr(0)
                if 'lds' in mods or 'load_lds' in mn: s.r+=regs_of('m0')
                if 'store' in mn and ('x4' in mn or 'x3' in mn):
                    s.wide=True
        else:
            raise Exception('unknown instr '+text)

def parse(lines):
    out=[]
    for l in lines:
        t=l.split(';')[0].strip()
        if not t or t.endswith(':') or t.startswith('.'): continue
        out.append(Ins(l.strip()))
    return out

def check(lines, name=''):
    ins=parse(lines)
    probs=[]
    isv=lambda r:r[0] in 'va'
    for i,c in enumerate(ins):
        dist=0
        cr=set(c.r); cw=set(c.w)
        cvalu=c.kind in('valu','trans')
        j=i-1
        while j>=0 and dist<24:
            p=ins[j]
            pw=set(p.w)
            need=0;why=''
            pvalu=p.kind in('valu','trans')
            def upd(n,w):
                nonlocal need,why
                if n>need: need=n;why=w
            if pvalu:
                vw={r for r in pw if isv(r)}; sw={r for r in pw if r[0]=='s'}
                if c.kind=='mfma' and vw&cr: upd(2,'valu->mfma')
                if p.kind=='trans' and c.kind=='valu' and vw&(cr|cw): upd(1,'trans->valu')
                if cvalu and 'permlane' in c.mn and vw&cr: upd(2,'valu->permlane')
                if cvalu and '_dpp' in c.mn and vw&cr: upd(2,'valu->dpp')
                if cvalu and ('readlane' in c.mn or 'readfirstlane' in c.mn) and vw&cr: upd(1,'valu->readlane')
                if c.kind=='vmem' and sw&cr: upd(5,'valu sgpr->vmem')
                if cvalu and sw&cr: upd(4 if 'lane' in c.mn else 2,'valu sgpr->valu')
                if ('sdwa' in p.mn or 'op_sel' in p.text) and cvalu and vw&(cr|cw): upd(1,'sdwa/opsel->valu')
                if set(regs_of('exec'))&pw and c.kind=='mfma': upd(4,'valu exec->mfma')
            if p.kind=='mfma':
                P=p.passes
                if c.kind=='mfma':
                    ab=set(c.r)-set(c.srcC) if c.srcC else set(c.r)
                    abl=set(regs_of(c.ops[1])+regs_of(c.ops[2]))
                    if pw&abl: upd(P+4,'mfma D->mfma A/B')
                    if c.srcC and pw&set(c.srcC):
                        if not (list(p.w)==list(c.srcC) and P==c.passes): upd(P+2,'mfma D->mfma C overlap')
                    elif pw&cw: upd(P+2,'mfma WAW')
                elif cvalu and pw&(cr|cw): upd(P+4,'mfma D->valu')
                elif c.kind in('ds','vmem') and pw&(cr|cw): upd(P+4,'mfma D->mem')
                if cvalu and set(p.srcC)&cw: upd(P-1,'mfma C WAR valu')
            if p.kind=='vmem' and p.wide and cw&set(regs_of(p.ops[0]) if p.mn.startswith('buffer') else regs_of(p.ops[1])):
                upd(2 if cvalu else 1,'wide store WAR')
            if p.kind=='salu' and ('s',124) in pw and c.kind=='vmem' and ('s',124) in cr: upd(1,'m0->lds dma')
            if need>dist:
                probs.append(f'{name}: HAZARD {why} need {need} have {dist}:\n    {p.text}\n    {c.text}')
            dist+=p.states
            j-=1
    vm=[];lg=[]
    for i,c in enumerate(ins):
        touched=set(c.r)|set(c.w)
        if c.kind=='wait':
            if 'vmcnt' in c.cnt:
                n=c.cnt['vmcnt']; vm=vm[len(vm)-n:] if n<len(vm) else vm
                if n==0: vm=[]
            if 'lgkmcnt' in c.cnt:
                n=c.cnt['lgkmcnt']
                if any(x[1]=='smem' for x in lg) and n>0:
                    probs.append(f'{name}: counted lgkmcnt with smem outstanding: {c.text}')
                lg=lg[len(lg)-n:] if n<len(lg) else lg
                if n==0: lg=[]
            continue
        for q,nm in((vm,'vm'),(lg,'lgkm')):
            for (ws,k,t) in q:
                if ws&touched:
                    probs.append(f'{name}: use of pending {nm} result:\n    {t}\n    {c.text}')
        if c.kind=='vmem':
            vm.append((set(c.w),'vmem',c.text))
            if len(vm)>63: probs.append(f'{name}: vmcnt overflow at {c.text}')
        elif c.kind=='ds':
            lg.append((set(c.w),'ds',c.text))
            if len(lg)>15: probs.append(f'{name}: lgkmcnt overflow(>15) at {c.text}')
        elif c.kind=='smem':
            lg.append((set(c.w),'smem',c.text))
    return probs

def vr(a,n=1,p='v'):
    return f'{p}{a}' if n==1 else f'{p}[{a}:{a+n-1}]'
def sr(a,n=1): return vr(a,n,'s')
def ar(a,n=1): return vr(a,n,'a')
```

```python
from asmlib import *
from layout import *
import struct
def f2u(f): return struct.unpack('<I',struct.pack('<f',f))[0]
SLOT=39936; XOFF=0; WOFF=16384; EOFF=36864; NSLOT=4; GOFF=NSLOT*SLOT
NCH=10
class K1:
    def __init__(s,name='proj_kernel',diag=False):
        s.name=name; s.diag=diag
        s.acc=[16+16*t for t in range(5)]
        s.accE=96
        s.W=[[112+32*b+4*t for t in range(5)] for b in range(2)]
        s.X=[112+32*b+20 for b in range(2)]
        s.E=176; s.XE=180
        s.xa=[184+i for i in range(4)]
        s.wa=[188+i for i in range(5)]
        s.ea=193; s.xea=194; s.ga=195; s.gacc=196
        s.T=2
        s.nv=200
    def reads(s,b,st,var):
        L=[f'ds_read_b128 {vr(s.X[b],4)}, v{s.xa[st]}']
        for t in range(5):
            for kk in range(2):
                L.append(f'ds_read_b64_tr_b16 {vr(s.W[b][t]+2*kk,2)}, v{s.wa[t]} offset:{(16*st+4*kk)*320}')
        return L
    def mfmas(s,b,var):
        L=[]
        for t in range(5):
            a,bb=(vr(s.W[b][t],4),vr(s.X[b],4)) if var!='V' else (vr(s.X[b],4),vr(s.W[b][t],4))
            L.append(f'v_mfma_f32_32x32x16_bf16 {vr(s.acc[t],16)}, {a}, {bb}, {vr(s.acc[t],16)}')
        return L
    def advance(s,c,var):
        d=SLOT if c%NSLOT else -(NSLOT-1)*SLOT
        regs=s.xa+s.wa+([s.ea,s.xea] if var in('QK','QV') else [])
        if d>0: return [f'v_add_u32 v{r}, {d}, v{r}' for r in regs]
        return [f'v_subrev_u32 v{r}, {-d}, v{r}' for r in regs]
    def mainloop(s,var):
        L=[]
        extra=var in('QK','QV'); gate=var=='V'
        L+=['s_barrier']
        def greads(c,st,b): return [f'ds_read_b128 {vr(s.E+4*b,4)}, v{s.ga} offset:{(64*c+16*st)*2}'] if gate else []
        L+=s.reads(0,0,var)+greads(0,0,0)
        for c in range(NCH):
            for st in range(4):
                n=4*c+st; b=n%2
                M=s.mfmas(b,var)
                L+=['s_waitcnt lgkmcnt(0)']
                dots=[f'v_dot2_f32_bf16 v{s.gacc}, v{s.X[b]+i}, v{s.E+4*b+i}, v{s.gacc}' for i in range(4)] if gate else []
                if st<3:
                    R=s.reads(1-b,st+1,var)+greads(c,st+1,1-b)
                    if extra and st==0:
                        R+=[f'ds_read_b64_tr_b16 {vr(s.E,2)}, v{s.ea}', f'ds_read_b64_tr_b16 {vr(s.E+2,2)}, v{s.ea} offset:160',
                            f'ds_read_b128 {vr(s.XE,4)}, v{s.xea}']
                    if extra and st==1:
                        a,bb=(vr(s.E,4),vr(s.XE,4)) if var=='QK' else (vr(s.XE,4),vr(s.E,4))
                        M=M+[f'v_mfma_f32_32x32x16_bf16 {vr(s.accE,16)}, {a}, {bb}, {vr(s.accE,16)}']
                    per=(len(R)+len(M)-2)//(len(M)-1)
                    k=0
                    for i,m in enumerate(M):
                        L.append(m)
                        L+=R[k:k+per]; k+=per
                        if i<len(dots): L.append(dots[i])
                    L+=R[k:]
                else:
                    if c<NCH-1:
                        L+=M[:2]+dots[:2]+['s_barrier']+s.advance(c+1,var)
                        R=s.reads(1-b,0,var)+greads(c+1,0,1-b)
                        L+=R[:4]+[M[2]]+dots[2:3]+R[4:8]+[M[3]]+dots[3:4]+R[8:]+[M[4]]
                    else:
                        L+=M+dots
        return L
    def pack_qk(s,scale):
        L=[]
        return L
    def epi_qk(s,isK):
        T=s.T; L=[]
        HS=163840 if isK else 81920
        g=lambda o: s.acc[o//4]+4*(o%4)
        L+=['s_nop 7','s_nop 3']
        if isK:
            N=112
            for m in range(4):
                sA,sB,sE=N+3*m,N+3*m+1,N+3*m+2
                for (d,os_) in((sA,(5*m,5*m+1)),(sB,(5*m+2,5*m+3)),(sE,(5*m+4,))):
                    first=True
                    for o in os_:
                        for i in range(4):
                            r=g(o)+i
                            L.append(f'v_mul_f32 v{d}, v{r}, v{r}' if first else f'v_fmac_f32 v{d}, v{r}, v{r}'); first=False
            L+=['s_nop 1']
            for m in range(4): L.append(f'v_permlane32_swap_b32 v{N+3*m}, v{N+3*m+1}')
            L+=['s_nop 1']
            for m in range(4): L.append(f'v_add_f32 v{N+3*m}, v{N+3*m}, v{N+3*m+1}')
            for m in range(4): L.append(f'v_add_f32 v{N+3*m}, v{N+3*m}, v{N+3*m+2}')
            for dpp in('quad_perm:[1,0,3,2]','quad_perm:[2,3,0,1]','row_half_mirror','row_mirror'):
                for m in range(4): L.append(f'v_max_f32_dpp v{N+3*m}, v{N+3*m}, v{N+3*m} {dpp} row_mask:0xf bank_mask:0xf')
            for m in range(4): L.append(f'v_mov_b32 v{N+3*m+1}, v{N+3*m}')
            L+=['s_nop 0']
            for m in range(4): L.append(f'v_permlane16_swap_b32 v{N+3*m}, v{N+3*m+1}')
            L+=['s_nop 1']
            for m in range(4): L.append(f'v_max_f32 v{N+3*m}, v{N+3*m}, v{N+3*m+1}')
            L+=[f'v_bfe_u32 v{T}, v0, 5, 1', f'v_lshlrev_b32 v{T}, 8, v{T}',
                's_mov_b32 s42, 1','s_mov_b32 s43, 1','s_mov_b64 exec, s[42:43]']
            for m in range(4): L.append(f'buffer_store_dword v{N+3*m}, v{T}, s[4:7], s40 offen offset:{512*m}')
            L+=['s_mov_b64 exec, -1']
        else:
            for t in range(5):
                for i in range(16): L.append(f'v_mul_f32 v{s.acc[t]+i}, s44, v{s.acc[t]+i}')
        L+=[f'v_and_b32 v{T}, 63, v0', f'v_lshlrev_b32 v{T}, 4, v{T}',
            f'v_bfe_u32 v{T+1}, v0, 5, 1', f'v_mul_u32_u24 v{T+1}, {HS}, v{T+1}' if HS<(1<<24) else None,
            f'v_and_b32 v{T+2}, 31, v0', f'v_lshl_add_u32 v{T+1}, v{T+2}, 3, v{T+1}', f'v_add_u32 v{T+1}, 1024, v{T+1}']
        Pk=128
        for m in range(4):
            B=Pk+10*m+ (0)
            B=Pk+12*m
            for pr in range(2):
                oA,oB=5*m+2*pr,5*m+2*pr+1; X=B+4*pr
                L+=[f'v_cvt_pk_bf16_f32 v{X}, v{g(oA)}, v{g(oA)+1}', f'v_cvt_pk_bf16_f32 v{X+1}, v{g(oA)+2}, v{g(oA)+3}',
                    f'v_cvt_pk_bf16_f32 v{X+2}, v{g(oB)}, v{g(oB)+1}', f'v_cvt_pk_bf16_f32 v{X+3}, v{g(oB)+2}, v{g(oB)+3}']
            oE=5*m+4
            L+=[f'v_cvt_pk_bf16_f32 v{B+8}, v{g(oE)}, v{g(oE)+1}', f'v_cvt_pk_bf16_f32 v{B+9}, v{g(oE)+2}, v{g(oE)+3}']
            for pr in range(2):
                X=B+4*pr
                L+=[f'v_permlane32_swap_b32 v{X}, v{X+2}', f'v_permlane32_swap_b32 v{X+1}, v{X+3}']
            L+=[f'buffer_store_dwordx2 {vr(B+8,2)}, v{T+1}, s[4:7], s41 offen',
                f'buffer_store_dwordx4 {vr(B,4)}, v{T}, s[4:7], s41 offen',
                f's_add_u32 s41, s41, {HS}',
                f'buffer_store_dwordx4 {vr(B+4,4)}, v{T}, s[4:7], s41 offen',
                f's_add_u32 s41, s41, {HS}']
        return [l for l in L if l]
    def epi_v(s):
        T=s.T; L=['s_nop 7','s_nop 3']
        L+=[f'v_and_b32 v{T}, 31, v0', f'v_bfe_u32 v{T+1}, v0, 5, 1', f'v_mul_u32_u24 v{T+1}, 320, v{T+1}', 's_mov_b32 s42, 163840']
        Pk=112
        for t in range(5):
            A=T+4+t
            L+=[f'v_add_u32 v{T+2}, {32*t}, v{T}', f'v_mul_u32_u24 v{T+3}, 3277, v{T+2}', f'v_lshrrev_b32 v{T+3}, 16, v{T+3}',
                f'v_mul_u32_u24 v{A}, 20, v{T+3}', f'v_sub_u32 v{T+2}, v{T+2}, v{A}',
                f'v_mul_lo_u32 v{A}, v{T+3}, s42', f'v_lshl_add_u32 v{A}, v{T+2}, 4, v{A}', f'v_add_u32 v{A}, v{A}, v{T+1}']
            for i in range(8):
                L.append(f'v_cvt_pk_bf16_f32 v{Pk+8*t+i}, v{s.acc[t]+2*i}, v{s.acc[t]+2*i+1}')
            L+=[f'buffer_store_dwordx4 {vr(Pk+8*t,4)}, v{A}, s[4:7], s41 offen offset:1280',
                f'buffer_store_dwordx4 {vr(Pk+8*t+4,4)}, v{A}, s[4:7], s41 offen offset:1920']
        return L
    def epi_gate(s):
        T=s.T; G=s.gacc; nm=s.name
        L=['s_cmp_lg_u32 s10, 12', f's_cbranch_scc1 L_{nm}_end2']
        def rne(r,t):
            return [f'v_cvt_pk_bf16_f32 v{r}, v{r}, v{r}', f'v_and_b32 v{r}, 0xffff0000, v{r}']
        L+=[f'v_mov_b32 v{T}, v{G}','s_nop 1',f'v_permlane32_swap_b32 v{G}, v{T}','s_nop 1',f'v_add_f32 v{G}, v{G}, v{T}']
        L+=rne(G,T)
        L+=[f'v_mul_f32 v{G}, {f2u(-LOG2E):#x}, v{G}', f'v_exp_f32 v{G}, v{G}', 's_nop 0', f'v_add_f32 v{G}, 1.0, v{G}', f'v_rcp_f32 v{G}, v{G}','s_nop 0']
        L+=rne(G,T)
        L+=[f'v_sub_f32 v{T}, 1.0, v{G}']+rne(T,T+1)
        L+=['s_mov_b32 s42, 0','s_mov_b32 s43, -1',
            f'v_cndmask_b32 v{G}, v{G}, v{T}, s[42:43]',
            f'v_and_b32 v{T}, 31, v0', f'v_lshlrev_b32 v{T}, 2, v{T}', f'v_bfe_u32 v{T+1}, v0, 5, 1', f'v_lshl_add_u32 v{T}, v{T+1}, 13, v{T}',
            f's_lshl_b32 s42, s45, 7', f's_add_u32 s42, s42, {GATE}',
            f'buffer_store_dword v{G}, v{T}, s[4:7], s42 offen']
        return L
    def extra_write(s):
        T=s.T
        L=['s_barrier', f'v_lshrrev_b32 v{T}, 6, v0', f'v_and_b32 v{T+1}, 63, v0', f'v_lshlrev_b32 v{T+1}, 4, v{T+1}', f'v_lshl_add_u32 v{T}, v{T}, 12, v{T+1}']
        for r4 in range(4): L.append(f'ds_write_b128 v{T}, {vr(s.accE+4*r4,4)} offset:{1024*r4}')
        L+=['s_waitcnt lgkmcnt(0)','s_barrier']
        return L
    def extra_epi(s,var):
        T=s.T; L=[]
        A=16
        L+=[f'v_and_b32 v{T+1}, 63, v0', f'v_lshlrev_b32 v{T}, 4, v{T+1}']
        for w in range(4):
            for r4 in range(4): L.append(f'ds_read_b128 {vr(A+16*w+4*r4,4)}, v{T} offset:{4096*w+1024*r4}')
            if w==2: L.append('s_waitcnt lgkmcnt(4)')
        L+=['s_waitcnt lgkmcnt(0)']
        for i in range(16):
            L+=[f'v_add_f32 v{A+i}, v{A+i}, v{A+16+i}', f'v_add_f32 v{A+32+i}, v{A+32+i}, v{A+48+i}']
        for i in range(16): L.append(f'v_add_f32 v{A+i}, v{A+i}, v{A+32+i}')
        X=96
        if var=='QK':
            N=112
            for i in range(8): L.append(f'v_mul_f32 v{N}, v{A}, v{A}' if i==0 else f'v_fmac_f32 v{N}, v{A+i}, v{A+i}')
            for i in range(4): L.append(f'v_mul_f32 v{N+2}, v{A+8}, v{A+8}' if i==0 else f'v_fmac_f32 v{N+2}, v{A+8+i}, v{A+8+i}')
            L+=[f'v_mov_b32 v{N+1}, v{N}','s_nop 1',f'v_permlane32_swap_b32 v{N}, v{N+1}','s_nop 1',
                f'v_add_f32 v{N}, v{N}, v{N+1}', f'v_add_f32 v{N}, v{N}, v{N+2}','s_nop 1']
            for dpp in('quad_perm:[1,0,3,2]','quad_perm:[2,3,0,1]','row_half_mirror','row_mirror'):
                L+=[f'v_max_f32_dpp v{N}, v{N}, v{N} {dpp} row_mask:0xf bank_mask:0xf','s_nop 1']
            L+=[f'v_mov_b32 v{N+1}, v{N}','s_nop 1',f'v_permlane16_swap_b32 v{N}, v{N+1}','s_nop 1',f'v_max_f32 v{N}, v{N}, v{N+1}',
                f'v_mov_b32 v{N+3}, 0']
            for i in range(6): L.append(f'v_cvt_pk_bf16_f32 v{X+i}, v{A+2*i}, v{A+2*i+1}')
            L+=['s_nop 1',f'v_permlane32_swap_b32 v{X}, v{X+2}', f'v_permlane32_swap_b32 v{X+1}, v{X+3}',
                f'buffer_store_dwordx4 {vr(X,4)}, v{T}, s[4:7], s46 offen',
                f'v_lshrrev_b32 v{T+1}, 1, v{T}',
                's_mov_b64 exec, 0xffffffff',
                f'buffer_store_dwordx2 {vr(X+4,2)}, v{T+1}, s[4:7], s46 offen offset:1024',
                's_mov_b64 exec, 1',
                f'buffer_store_dword v{N}, v{N+3}, s[4:7], s47 offen']
        else:
            for i in range(8): L.append(f'v_cvt_pk_bf16_f32 v{X+i}, v{A+2*i}, v{A+2*i+1}')
            L+=[f'v_and_b32 v{T}, 31, v0', f'v_bfe_u32 v{T+1}, v0, 5, 1', f'v_mul_u32_u24 v{T+1}, 320, v{T+1}', f'v_lshl_add_u32 v{T}, v{T}, 4, v{T+1}',
                's_mov_b32 s42, 0x000fffff','s_mov_b32 s43, 0x000fffff','s_mov_b64 exec, s[42:43]',
                f'buffer_store_dwordx4 {vr(X,4)}, v{T}, s[4:7], s46 offen offset:1280',
                f'buffer_store_dwordx4 {vr(X+4,4)}, v{T}, s[4:7], s46 offen offset:1920']
        return L
    def loader(s,extra):
        T=s.T; L=[]
        vx=[16,17]; vw=[18+i for i in range(5)]; ve=23
        L+=[f'v_and_b32 v{T}, 63, v0', f'v_lshrrev_b32 v{T+1}, 3, v{T}', f'v_mul_u32_u24 v{T+1}, 1280, v{T+1}',
            f'v_and_b32 v{T+2}, 7, v{T}', f'v_lshrrev_b32 v{T+3}, 4, v{T}', f'v_xor_b32 v{T+2}, v{T+2}, v{T+3}',
            f'v_lshl_add_u32 v{vx[0]}, v{T+2}, 4, v{T+1}', f'v_xor_b32 v{T+2}, 4, v{T+2}', f'v_lshl_add_u32 v{vx[1]}, v{T+2}, 4, v{T+1}']
        L+=['s_mul_i32 s25, s8, 320']
        for i in range(5):
            L+=[f'v_add_u32 v{T+1}, s25, v{T}', f'v_add_u32 v{T+1}, {64*i}, v{T+1}' if i else None,
                f'v_mul_u32_u24 v{T+2}, 3277, v{T+1}', f'v_lshrrev_b32 v{T+2}, 16, v{T+2}',
                f'v_mul_u32_u24 v{T+3}, 20, v{T+2}', f'v_sub_u32 v{T+1}, v{T+1}, v{T+3}',
                f'v_mul_lo_u32 v{vw[i]}, v{T+2}, s24', f'v_lshl_add_u32 v{vw[i]}, v{T+1}, 4, v{vw[i]}']
        L+=[f'v_lshlrev_b32 v{ve}, 4, v{T}']
        L=[l for l in L if l]
        L+=['s_lshl_b32 s26, s9, 7','s_lshl_b32 s30, s8, 5','s_add_u32 s26, s26, s30','s_mul_i32 s26, s26, 1280',
            's_lshl_b32 s29, s24, 6', 's_mul_i32 s28, s8, 640',
            's_lshl_b32 s31, s8, 12',
            's_mul_i32 s32, s8, 5120', f's_add_u32 s32, s32, {WOFF}',
            's_mul_i32 s33, s8, 640', f's_add_u32 s33, s33, {EOFF}',
            's_mov_b32 s34, -1','s_mov_b32 s35, 0xff']
        ND=10 if extra else 9
        def chunk(c):
            so=(c%NSLOT)*SLOT; C=[]
            for i in range(4):
                C+=[f's_add_u32 m0, s31, {so+1024*i}', f's_add_u32 s36, s26, {c*128+i*8*1280}',
                    f'buffer_load_dwordx4 v{vx[i%2]}, s[12:15], s36 offen lds']
            for i in range(5):
                C+=[f's_add_u32 m0, s32, {so+1024*i}', 's_nop 0',
                    f'buffer_load_dwordx4 v{vw[i]}, s[16:19], s27 offen lds']
            C+=['s_add_u32 s27, s27, s29']
            if extra:
                C+=[f's_add_u32 m0, s33, {so}', 's_mov_b64 exec, s[34:35]',
                    f'buffer_load_dwordx4 v{ve}, s[20:23], s28 offen lds', 's_mov_b64 exec, -1', 's_add_u32 s28, s28, 2560']
            return C
        if not extra:
            pass
        for c in range(NSLOT): L+=chunk(c)
        for c in range(NCH):
            rem=(NSLOT-1 if c==0 else min(NCH-1,c+NSLOT-2))-c
            L+=[f's_waitcnt vmcnt({rem*ND})','s_barrier']
            if c>=1 and c+NSLOT-1<NCH: pass
            if c>=1 and c-1+NSLOT<NCH: L+=chunk(c-1+NSLOT)
        return L
    def gen(s):
        nm=s.name; T=s.T
        P=[f's_cmp_ge_u32 s2, 256', f's_cbranch_scc1 L_{nm}_end',
           's_load_dwordx4 s[48:51], s[0:1], 0',
           's_load_dwordx4 s[52:55], s[0:1], 16',
           's_load_dwordx2 s[56:57], s[0:1], 48',
           's_load_dwordx2 s[58:59], s[0:1], 64',
           's_load_dwordx2 s[4:5], s[0:1], 88',
           'v_lshrrev_b32 v1, 6, v0',
           's_and_b32 s16, s2, 7','s_lshr_b32 s17, s2, 3',
           'v_readfirstlane_b32 s3, v1',
           's_and_b32 s18, s16, 1','s_lshl_b32 s18, s18, 3','s_and_b32 s19, s17, 7','s_add_u32 s9, s18, s19',
           's_lshr_b32 s18, s16, 1','s_lshl_b32 s18, s18, 2','s_lshr_b32 s19, s17, 3','s_add_u32 s10, s18, s19',
           's_and_b32 s8, s3, 3',
           's_lshl_b32 s45, s9, 2','s_add_u32 s45, s45, s8',
           's_waitcnt lgkmcnt(0)',
           's_and_b32 s5, s5, 0xffff', f's_mov_b32 s6, {WS_BYTES}', 's_mov_b32 s7, 0x20000',
           's_mov_b32 s12, s48','s_and_b32 s13, s49, 0xffff','s_mov_b32 s14, 2621440','s_mov_b32 s15, 0x20000',
           's_mov_b32 s18, 819200','s_mov_b32 s24, 1280',
           's_cmp_lt_u32 s10, 4',
           's_cselect_b32 s16, s50, s56','s_cselect_b32 s17, s51, s57','s_cselect_b32 s18, s18, 2457600','s_cselect_b32 s24, s24, 3840',
           's_cselect_b32 s20, s52, s54','s_cselect_b32 s21, s53, s55',
           's_cselect_b32 s27, 0, 4','s_and_b32 s17, s17, 0xffff','s_mov_b32 s19, 0x20000',
           's_and_b32 s21, s21, 0xffff','s_mov_b32 s22, 25600','s_mov_b32 s23, 0x20000',
           's_sub_u32 s27, s10, s27','s_mul_i32 s27, s27, 320',
           's_cmp_ge_u32 s3, 4', f's_cbranch_scc1 L_{nm}_loader']
        C=[]
        for t in range(5):
            for i in range(16): C.append(f'v_mov_b32 v{s.acc[t]+i}, 0')
        for i in range(16): C.append(f'v_mov_b32 v{s.accE+i}, 0')
        C.append(f'v_mov_b32 v{s.gacc}, 0')
        C+=[f'v_and_b32 v{T}, 31, v0', f'v_bfe_u32 v{T+1}, v0, 5, 1',
            f'v_bfe_u32 v{T+2}, v0, 1, 3', f'v_xor_b32 v{T+2}, v{T+2}, v{T+1}',
            f'v_lshlrev_b32 v{T+3}, 7, v{T}', 's_lshl_b32 s25, s8, 12', f'v_add_u32 v{T+4}, s25, v{T+3}']
        for st in range(4):
            C+=[f'v_xor_b32 v{T+5}, {2*st}, v{T+2}', f'v_lshl_add_u32 v{s.xa[st]}, v{T+5}, 4, v{T+4}']
        C+=['s_and_b32 s25, s10, 3','s_lshl_b32 s26, s25, 12','s_lshl_b32 s28, s8, 1',
            f'v_add_u32 v{T+4}, s26, v{T+3}', f'v_xor_b32 v{T+5}, s28, v{T+2}', f'v_lshl_add_u32 v{s.xea}, v{T+5}, 4, v{T+4}']
        C+=[f'v_bfe_u32 v{T+3}, v0, 2, 2', f'v_lshl_add_u32 v{T+3}, v{T+1}, 3, v{T+3}',
            f'v_and_b32 v{T+4}, 3, v0', f'v_bfe_u32 v{T+5}, v0, 4, 1', f'v_lshl_add_u32 v{T+4}, v{T+5}, 2, v{T+4}',
            's_lshl_b32 s28, s8, 4', f'v_add_u32 v{T+5}, s28, v{T+3}', f'v_mul_u32_u24 v{T+5}, 40, v{T+5}',
            f'v_lshl_add_u32 v{s.ea}, v{T+4}, 3, v{T+5}', f'v_add_u32 v{s.ea}, {EOFF}, v{s.ea}',
            f'v_mul_u32_u24 v{T+3}, 320, v{T+3}', f'v_add_u32 v{T+3}, {WOFF}, v{T+3}',
            f'v_lshlrev_b32 v{s.ga}, 4, v{T+1}', f'v_add_u32 v{s.ga}, {GOFF}, v{s.ga}']
        Cnat=[]; Cperm=[]
        for t in range(5):
            Cnat+=[f'v_add_u32 v{T+5}, {8*t}, v{T+4}', f'v_lshl_add_u32 v{s.wa[t]}, v{T+5}, 3, v{T+3}']
            Cperm+=[f'v_add_u32 v{T+5}, {8*t}, v{T+4}',
                    f'v_mul_u32_u24 v{T+6}, 6554, v{T+5}', f'v_lshrrev_b32 v{T+6}, 16, v{T+6}',
                    f'v_mul_u32_u24 v{T+6}, 10, v{T+6}', f'v_sub_u32 v{T+7}, v{T+5}, v{T+6}',
                    f'v_lshlrev_b32 v{T+7}, 2, v{T+7}',
                    f'v_lshrrev_b64 {vr(T+8,2)}, v{T+7}, s[60:61]', f'v_and_b32 v{T+8}, 15, v{T+8}',
                    f'v_add_u32 v{T+5}, v{T+6}, v{T+8}', f'v_lshl_add_u32 v{s.wa[t]}, v{T+5}, 3, v{T+3}']
        Cperm=['s_mov_b32 s60, 0x87653210','s_mov_b32 s61, 0x94']+Cperm
        C+=[f's_mov_b32 s44, {f2u(QSCALE):#x}']
        disp=['s_cmp_lt_u32 s10, 4', f's_cbranch_scc1 L_{nm}_QK','s_cmp_lt_u32 s10, 8', f's_cbranch_scc1 L_{nm}_QV',
              's_cmp_lt_u32 s10, 12', f's_cbranch_scc1 L_{nm}_K']
        baseQ=['s_mul_i32 s41, s10, 655360','s_mul_i32 s42, s45, 1280','s_add_u32 s41, s41, s42']
        baseK=['s_sub_u32 s42, s10, 8','s_lshl_b32 s42, s42, 3','s_add_u32 s42, s42, 1',
               's_mul_i32 s41, s42, 163840','s_mul_i32 s43, s45, 2560','s_add_u32 s41, s41, s43',f's_add_u32 s41, s41, {KVIMG}',
               's_lshl_b32 s40, s42, 8','s_lshl_b32 s43, s45, 2','s_add_u32 s40, s40, s43',f's_add_u32 s40, s40, {KMAX}']
        baseV=['s_sub_u32 s42, s10, 12','s_lshl_b32 s42, s42, 3','s_add_u32 s42, s42, 1',
               's_mul_i32 s41, s42, 163840','s_mul_i32 s43, s45, 2560','s_add_u32 s41, s41, s43',f's_add_u32 s41, s41, {KVIMG}']
        varV=Cnat+baseV+s.mainloop('V')+s.epi_v()+s.epi_gate()+[f'L_{nm}_end2:','s_endpgm']
        varQK=Cperm+baseQ+s.mainloop('QK')+['s_nop 7','s_nop 3']+s.extra_write()+s.epi_qk(False)+['s_endpgm']
        varQV=Cperm+baseQ+s.mainloop('QV')+['s_nop 7','s_nop 3']+s.extra_write()+s.epi_qk(False)+['s_endpgm']
        varK=Cperm+baseK+s.mainloop('K')+s.epi_qk(True)+['s_endpgm']
        Lg=['s_mov_b32 s20, s58','s_and_b32 s21, s59, 0xffff','s_mov_b32 s22, 1280',
            f'v_and_b32 v{T}, 63, v0', f'v_lshlrev_b32 v{T}, 4, v{T}',
            's_mul_i32 s25, s8, 320', f's_add_u32 m0, s25, {GOFF}', 's_mov_b64 exec, 0xfffff',
            f'buffer_load_dwordx4 v{T}, s[20:23], s25 offen lds', 's_mov_b64 exec, -1']
        exb=['s_and_b32 s25, s10, 3','s_lshl_b32 s26, s9, 2','s_add_u32 s25, s25, s26',
             's_mul_i32 s46, s25, 2560', f's_add_u32 s46, s46, {KVIMG}', 's_lshl_b32 s47, s25, 2', f's_add_u32 s47, s47, {KMAX}']
        LdE=s.loader(True)+['s_barrier','s_barrier','s_cmp_lg_u32 s8, 0',f's_cbranch_scc1 L_{nm}_end']+exb
        LdN=Lg+s.loader(False)+['s_endpgm']
        out=[f'.globl {nm}','.p2align 8',f'.type {nm},@function',f'{nm}:']
        out+=P+C+disp+varV+[f'L_{nm}_QK:']+varQK+[f'L_{nm}_QV:']+varQV+[f'L_{nm}_K:']+varK
        out+=[f'L_{nm}_loader:','s_cmp_ge_u32 s10, 8',f's_cbranch_scc1 L_{nm}_ldn']+LdE
        out+=['s_cmp_lt_u32 s10, 4',f's_cbranch_scc1 L_{nm}_exK']+s.extra_epi('QV')+['s_endpgm',f'L_{nm}_exK:']+s.extra_epi('QK')+['s_endpgm']
        out+=[f'L_{nm}_ldn:']+LdN
        out+=[f'L_{nm}_end:','s_endpgm']
        probs=[]
        for n,v in(('V',varV),('QK',varQK),('QV',varQV),('K',varK)): probs+=check(P+C+v,nm+'/'+n)
        probs+=check(P+LdE+s.extra_epi('QV'),nm+'/ldE1')+check(P+LdE+s.extra_epi('QK'),nm+'/ldE2')+check(P+LdN,nm+'/ldN')
        kd=f""".amdhsa_kernel {nm}
  .amdhsa_next_free_vgpr {s.nv}
  .amdhsa_next_free_sgpr 64
  .amdhsa_accum_offset {(s.nv+3)//4*4}
  .amdhsa_group_segment_fixed_size 0
  .amdhsa_kernarg_size 96
  .amdhsa_user_sgpr_count 2
  .amdhsa_user_sgpr_kernarg_segment_ptr 1
  .amdhsa_system_sgpr_workgroup_id_x 1
.end_amdhsa_kernel"""
        launch=f'; @launch kernel={nm} grid=(256,1,1) block=(512,1,1) lds={GOFF+1280}'
        return out,kd,launch,probs
if __name__=='__main__':
    k=K1()
    out,kd,launch,probs=k.gen()
    print(k.nv,len(out))
    for p in probs[:40]: print(p)
```

```python
from asmlib import *
from layout import *
import struct
def f2u(f): return struct.unpack('<I',struct.pack('<f',f))[0]

class K2:
    def __init__(s, NQ=2, U=8, name='attn_kernel', diag=False, exper=''):
        s.NQ=NQ; s.U=U; s.name=name; s.diag=diag; s.exper=exper
        s.NW=16//NQ
        r=4
        s.aK1=1; s.aK2=2; s.aV=3
        s.Q1=[];s.Q2=[]
        for j in range(NQ): s.Q1.append(r); r+=4
        for j in range(NQ): s.Q2.append(r); r+=2
        r=(r+3)//4*4
        s.K1=[r,r+4]; r+=8
        s.K2=[r,r+2]; r+=4
        s.V=[r,r+8]; r+=16
        s.P=[r,r+8]; r+=16
        s.S=[r,r+16]; r+=32
        s.O=[]
        for j in range(NQ): s.O.append(r); r+=16
        s.T=r; r+=8
        s.nv=r
    def slot(s, t, j, toff, first=False, last=False, nok=False):
        NQ=s.NQ; L=[]
        n=t*NQ+j
        Sc=s.S[n%2]; Sn=s.S[(n+1)%2]; Pc=s.P[n%2]; Pp=s.P[(n-1)%2]
        jn=(j+1)%NQ; tn=t+(1 if j==NQ-1 else 0)
        jp=(j-1)%NQ; tp=t-(1 if j==0 else 0)
        mf=[]
        if not last:
            mf.append([f'v_mfma_f32_32x32x16_bf16 {vr(Sn,16)}, {vr(s.K1[tn%2],4)}, {vr(s.Q1[jn],4)}, 0'])
            mf.append([f'v_mfma_f32_32x32x8_bf16 {vr(Sn,16)}, {vr(s.K2[tn%2],2)}, {vr(s.Q2[jn],2)}, {vr(Sn,16)}'])
        else: mf+= [[],[]]
        if not first:
            mf.append([f'v_mfma_f32_32x32x16_bf16 {vr(s.O[jp],16)}, {vr(s.V[tp%2],4)}, {vr(Pp,4)}, {vr(s.O[jp],16)}'])
            mf.append([f'v_mfma_f32_32x32x16_bf16 {vr(s.O[jp],16)}, {vr(s.V[tp%2]+4,4)}, {vr(Pp+4,4)}, {vr(s.O[jp],16)}'])
        else: mf+= [[],[]]
        pre=[[],[],[],[]]
        post=[[],[],[],[]]
        if j==NQ-1 and not last:
            pre[0].append('s_waitcnt lgkmcnt(2)' if NQ==2 else 's_waitcnt lgkmcnt(0)')
        if j==NQ-1 and not nok:
            o=(toff+2)*2560
            post[0].append(f'ds_read_b128 {vr(s.K1[t%2],4)}, v{s.aK1} offset:{o}')
            post[1].append(f'ds_read_b32 v{s.K2[t%2]}, v{s.aK2} offset:{o}')
        if j==0:
            o=toff*2560
            post[0]+= ['s_mov_b64 exec, s[14:15]',
                       f'ds_read_b128 {vr(s.V[t%2],4)}, v{s.aV} offset:{o}',
                       f'ds_read_b128 {vr(s.V[t%2]+4,4)}, v{s.aV} offset:{o+640}',
                       's_mov_b64 exec, -1']
        if j==1:
            cnt = 2 if (NQ==2 and not nok) else 0
            pre[2].append(f's_waitcnt lgkmcnt({cnt})')
        va=[]
        for i in range(16):
            va.append(f'v_exp_f32 v{Sc+i}, v{Sc+i}')
            if i>=2 and i%2==0:
                va.append(f'v_cvt_pk_bf16_f32 v{Pc+(i-2)//2}, v{Sc+i-2}, v{Sc+i-1}')
        va.append('s_nop 0')
        va.append(f'v_cvt_pk_bf16_f32 v{Pc+7}, v{Sc+14}, v{Sc+15}')
        cuts=[0,6,12,18,len(va)]
        for k in range(4):
            L+=pre[k]+mf[k]+post[k]+va[cuts[k]:cuts[k+1]]
        if 'noexp' in s.exper: L=[l.replace('v_exp_f32','v_mov_b32') for l in L]
        if 'noqk' in s.exper: L=[l for l in L if not(l.startswith('v_mfma') and (vr(s.S[0],16) in l or vr(s.S[1],16) in l))]
        if 'nopv' in s.exper: L=[l for l in L if not(l.startswith('v_mfma') and not (vr(s.S[0],16) in l or vr(s.S[1],16) in l))]
        if 'nolds' in s.exper: L=[l for l in L if not l.startswith('ds_read')]
        if 'nocvt' in s.exper: L=[l for l in L if not l.startswith('v_cvt')]
        return L
    def tiles(s, t0, n, first=False, last=False):
        L=[]
        for tt in range(n):
            t=t0+tt
            for j in range(s.NQ):
                L+=s.slot(t,j,tt, first=(first and tt==0 and j==0), last=(last and tt==n-1 and j==s.NQ-1),
                          nok=(last and tt>=n-2))
        return L
    def adv(s):
        a=s.U*2560
        return [f'v_add_u32 v{s.aK1}, {a}, v{s.aK1}', f'v_add_u32 v{s.aK2}, {a}, v{s.aK2}', f'v_add_u32 v{s.aV}, {a}, v{s.aV}']
    def addr_init(s):
        T=s.T
        return [f'v_and_b32 v{T}, 63, v0',
                f'v_lshlrev_b32 v{s.aK1}, 4, v{T}',
                f'v_and_b32 v{T+1}, 31, v0',
                f'v_bfe_u32 v{T+2}, v0, 5, 1',
                f'v_lshlrev_b32 v{s.aK2}, 3, v{T+1}',
                f'v_lshl_add_u32 v{s.aK2}, v{T+2}, 2, v{s.aK2}',
                f'v_add_u32 v{s.aK2}, 1024, v{s.aK2}',
                f'v_mul_u32_u24 v{s.aV}, 320, v{T+2}',
                f'v_lshl_add_u32 v{s.aV}, v{T+1}, 4, v{s.aV}',
                f'v_add_u32 v{s.aV}, 1280, v{s.aV}']
    def set_m(s, j, m):
        T=s.T+4
        return [f'v_and_b32 v{T}, 0xffff0000, v{m}',
                f'v_sub_f32 v{T+1}, v{m}, v{T}',
                f'v_and_b32 v{T+2}, 0xffff0000, v{T+1}',
                f'v_sub_f32 v{T+1}, v{T+1}, v{T+2}',
                f'v_lshrrev_b32 v{T}, 16, v{T}',
                f'v_or_b32 v{T}, v{T}, v{T+2}',
                f'v_lshrrev_b32 v{T+1}, 16, v{T+1}',
                f'v_xor_b32 v{T}, 0x80008000, v{T}',
                f'v_xor_b32 v{T+1}, 0x8000, v{T+1}',
                f'v_cndmask_b32 v{s.Q2[j]+1}, v{T}, v{T+1}, s[16:17]']
    def gen(s):
        NQ=s.NQ; NW=s.NW; U=s.U; T=s.T; nm=s.name
        ND=160//NW
        P=[]
        P+=[f's_cmp_ge_u32 s2, 256', f's_cbranch_scc1 L_{nm}_end',
            's_load_dwordx2 s[4:5], s[0:1], 88',]+(['s_memtime s[40:41]','s_memrealtime s[48:49]'] if s.diag else [])+[
            'v_lshrrev_b32 v1, 6, v0',
            's_and_b32 s16, s2, 7', 's_lshr_b32 s17, s2, 3',
            'v_readfirstlane_b32 s8, v1',
            's_and_b32 s10, s17, 3', 's_lshr_b32 s17, s17, 2', 's_lshl_b32 s17, s17, 3', 's_add_u32 s9, s17, s16',
            's_sub_u32 s11, s9, 31', 's_cmp_lt_u32 s9, 32', 's_cselect_b32 s11, 0, s11',
            's_mov_b32 s14, 0x000fffff', 's_mov_b32 s15, 0x000fffff',
            's_mov_b32 s16, 0', 's_mov_b32 s17, -1',
            's_mov_b32 s20, 0']
        P+=s.addr_init()
        P+=[f's_lshl_b32 s21, s10, 4', f's_mul_i32 s22, s8, {NQ}', 's_add_u32 s21, s21, s22',
            's_lshl_b32 s22, s9, 6', 's_add_u32 s22, s22, s21', 's_mul_i32 s22, s22, 1280',
            f's_mul_i32 s23, s11, 163840', f's_add_u32 s23, s23, {KVIMG}',
            's_lshl_b32 s24, s8, 10', 's_add_u32 s23, s23, s24',
            f's_lshl_b32 s25, s11, 8', f's_add_u32 s25, s25, {KMAX}',
            f'v_lshrrev_b32 v{T+3}, 2, v{s.aK1}',
            's_waitcnt lgkmcnt(0)',
            's_and_b32 s5, s5, 0xffff', f's_mov_b32 s6, {WS_BYTES}', 's_mov_b32 s7, 0x20000']
        for j in range(NQ):
            P+=[f'buffer_load_dwordx4 {vr(s.Q1[j],4)}, v{s.aK1}, s[4:7], s22 offen offset:{j*1280}',
                f'buffer_load_dword v{s.Q2[j]}, v{s.aK2}, s[4:7], s22 offen offset:{j*1280}']
        P+=[f'buffer_load_dword v{T}, v{T+3}, s[4:7], s25 offen']
        for i in range(ND):
            P+=['s_mov_b32 m0, s24', f's_add_u32 s24, s24, {NW*1024}',
                f'buffer_load_dwordx4 v{s.aK1}, s[4:7], s23 offen lds',
                f's_add_u32 s23, s23, {NW*1024}']
        for b in range(2):
            P+=[f'v_mov_b32 v{s.K2[b]+1}, 0x3f803f80']
            for i in range(8): P+=[f'v_mov_b32 v{s.V[b]+i}, 0x3f803f80']
        if 'vzero' in s.exper:
            P+=['s_mov_b32 s18, 0xffe00000','s_mov_b32 s19, 0xffe00000','s_mov_b64 exec, s[18:19]']
            for b in range(2):
                for i in range(8): P+=[f'v_mov_b32 v{s.V[b]+i}, 0']
            P+=['s_mov_b64 exec, -1']
        P+=[f's_waitcnt vmcnt({ND})']
        P+=[f'v_max_f32_dpp v{T}, v{T}, v{T} quad_perm:[1,0,3,2] row_mask:0xf bank_mask:0xf', 's_nop 1',
            f'v_max_f32_dpp v{T}, v{T}, v{T} quad_perm:[2,3,0,1] row_mask:0xf bank_mask:0xf', 's_nop 1',
            f'v_max_f32_dpp v{T}, v{T}, v{T} row_half_mirror row_mask:0xf bank_mask:0xf', 's_nop 1',
            f'v_max_f32_dpp v{T}, v{T}, v{T} row_mirror row_mask:0xf bank_mask:0xf', 's_nop 1',
            f'v_readlane_b32 s26, v{T}, 0', f'v_readlane_b32 s27, v{T}, 16', f'v_readlane_b32 s28, v{T}, 32', f'v_readlane_b32 s29, v{T}, 48',
            's_nop 1',
            's_max_u32 s26, s26, s27', 's_max_u32 s28, s28, s29', 's_max_u32 s26, s26, s28']
        for j in range(NQ):
            P+=[f'v_mov_b32 v{T+1}, 0']
            for i in range(4): P+=[f'v_dot2_f32_bf16 v{T+1}, v{s.Q1[j]+i}, v{s.Q1[j]+i}, v{T+1}']
            P+=[f'v_dot2_f32_bf16 v{T+1}, v{s.Q2[j]}, v{s.Q2[j]}, v{T+1}', 's_nop 2',
                f'v_mov_b32 v{T+2}, v{T+1}', 's_nop 1',
                f'v_permlane32_swap_b32 v{T+1}, v{T+2}', 's_nop 1',
                f'v_add_f32 v{T+1}, v{T+1}, v{T+2}',
                f'v_mul_f32 v{T+1}, s26, v{T+1}',
                f'v_sqrt_f32 v{T+1}, v{T+1}', 's_nop 0',
                f'v_mul_f32 v{T+1}, {f2u(1.02):#x}, v{T+1}',
                f'v_add_f32 v{T+1}, {f2u(1e-3):#x}, v{T+1}']
            P+=s.set_m(j,T+1)
        n0=(9*2560+1280+NW*1024-1)//(NW*1024) if U==8 else None
        n0=((U+1)*2560+1280+NW*1024-1)//(NW*1024)
        P+=[f's_waitcnt vmcnt({ND-n0})', 's_barrier']
        if s.diag: P+=['s_memtime s[42:43]','s_waitcnt lgkmcnt(0)']
        R=[]
        for j in range(NQ):
            for i in range(16): R+=[f'v_mov_b32 v{s.O[j]+i}, 0']
        R+=[f'ds_read_b128 {vr(s.K1[0],4)}, v{s.aK1}', f'ds_read_b32 v{s.K2[0]}, v{s.aK2}',
            f'ds_read_b128 {vr(s.K1[1],4)}, v{s.aK1} offset:2560', f'ds_read_b32 v{s.K2[1]}, v{s.aK2} offset:2560',
            's_waitcnt lgkmcnt(2)',
            f'v_mfma_f32_32x32x16_bf16 {vr(s.S[0],16)}, {vr(s.K1[0],4)}, {vr(s.Q1[0],4)}, 0',
            f'v_mfma_f32_32x32x8_bf16 {vr(s.S[0],16)}, {vr(s.K2[0],2)}, {vr(s.Q2[0],2)}, {vr(s.S[0],16)}',
            's_waitcnt lgkmcnt(0)', 's_nop 9']
        F=s.tiles(0,U,first=True)+s.adv()
        Bar=['s_waitcnt vmcnt(0)','s_barrier']
        NI=64//U
        B=s.tiles(0,U)+s.adv()
        Lz=s.tiles(0,U,last=True)
        n=U*NQ-1
        E=['s_nop 1',
           f'v_mfma_f32_32x32x16_bf16 {vr(s.O[NQ-1],16)}, {vr(s.V[(U-1)%2],4)}, {vr(s.P[n%2],4)}, {vr(s.O[NQ-1],16)}',
           f'v_mfma_f32_32x32x16_bf16 {vr(s.O[NQ-1],16)}, {vr(s.V[(U-1)%2]+4,4)}, {vr(s.P[n%2]+4,4)}, {vr(s.O[NQ-1],16)}',
           's_nop 11']
        Lr=[s.S[0]+j for j in range(NQ)]
        Lt=[s.S[1]+j for j in range(NQ)]
        E+=['s_mov_b64 s[30:31], 0']
        if s.diag: E+=['s_memtime s[44:45]','s_waitcnt lgkmcnt(0)']
        for j in range(NQ):
            E+=[f'v_mov_b32 v{Lr[j]}, v{s.O[j]+8}', f'v_mov_b32 v{Lt[j]}, v{s.O[j]+8}']
        E+=['s_nop 1']
        for j in range(NQ):
            E+=[f'v_permlane32_swap_b32 v{Lt[j]}, v{Lr[j]}']
        E+=['s_nop 1', f's_mov_b32 s32, {f2u(2.0**-60):#x}']
        for j in range(NQ):
            E+=[f'v_cmp_nle_f32 vcc, s32, v{Lr[j]}', 's_or_b64 s[30:31], s[30:31], vcc']
        C=['s_cmp_lg_u32 s20, 0' if not s.exper.startswith('no') else 's_cmp_eq_u32 s20, 0', f's_cbranch_scc1 L_{nm}_store',
           's_cmp_lg_u64 s[30:31], 0', f's_cbranch_scc1 L_{nm}_truemax']
        St=[]
        A1=s.aK1; A2=s.aK2
        St+=[f'v_bfe_u32 v{T}, v0, 4, 1', f'v_mul_u32_u24 v{A2}, 40960, v{T}',
             f'v_and_b32 v{T}, 15, v0', f'v_lshl_add_u32 v{A2}, v{T}, 4, v{A2}',
             f'v_bfe_u32 v{T}, v0, 5, 1', f'v_lshl_add_u32 v{A1}, v{T}, 8, v{A2}',
             's_and_b32 s35, s9, 31', 's_lshr_b32 s36, s9, 5', 's_mul_i32 s36, s36, 80',
             's_mul_i32 s33, s21, 81920', f's_add_u32 s33, s33, {OBUF}',
             's_lshr_b32 s37, s35, 1', 's_add_u32 s37, s37, s36', 's_add_u32 s37, s37, 64', 's_lshl_b32 s37, s37, 8',
             's_and_b32 s38, s35, 1', 's_lshl_b32 s38, s38, 3', 's_add_u32 s37, s37, s38', 's_add_u32 s34, s33, s37',
             's_lshl_b32 s35, s35, 1', 's_add_u32 s35, s35, s36', 's_lshl_b32 s35, s35, 8', 's_add_u32 s33, s33, s35']
        for j in range(NQ):
            St+=[f'v_rcp_f32 v{Lr[j]}, v{Lr[j]}']
        St+=['s_nop 0']
        for j in range(NQ):
            O=s.O[j]; X=s.P[0] if j%2==0 else s.P[1]
            for i in range(12): St+=[f'v_mul_f32 v{O+i}, v{O+i}, v{Lr[j]}']
            St+=[f'v_cvt_pk_bf16_f32 v{X}, v{O}, v{O+1}', f'v_cvt_pk_bf16_f32 v{X+1}, v{O+2}, v{O+3}',
                 f'v_cvt_pk_bf16_f32 v{X+2}, v{O+4}, v{O+5}', f'v_cvt_pk_bf16_f32 v{X+3}, v{O+6}, v{O+7}',
                 f'v_cvt_pk_bf16_f32 v{X+4}, v{O+8}, v{O+9}', f'v_cvt_pk_bf16_f32 v{X+5}, v{O+10}, v{O+11}',
                 f'v_permlane32_swap_b32 v{X}, v{X+2}', f'v_permlane32_swap_b32 v{X+1}, v{X+3}',
                 f'buffer_store_dwordx4 {vr(X,4)}, v{A1}, s[4:7], s33 offen',
                 's_mov_b64 exec, 0xffffffff',
                 f'buffer_store_dwordx2 {vr(X+4,2)}, v{A2}, s[4:7], s34 offen',
                 's_mov_b64 exec, -1',
                 's_add_u32 s33, s33, 81920', 's_add_u32 s34, s34, 81920']
        if s.diag:
            St+=['s_waitcnt vmcnt(0)','s_memtime s[46:47]','s_memrealtime s[50:51]','s_waitcnt lgkmcnt(0)',
                 's_sub_u32 s42, s42, s40','s_sub_u32 s44, s44, s40','s_sub_u32 s46, s46, s40','s_sub_u32 s50, s50, s48',
                 'v_mov_b32 v4, s42','v_mov_b32 v5, s44','v_mov_b32 v6, s46','v_mov_b32 v7, s50',
                 f's_mul_i32 s52, s2, {NW}','s_add_u32 s52, s52, s8','s_lshl_b32 s52, s52, 4',f's_add_u32 s52, s52, {WS_END}',
                 'v_mov_b32 v1, 0','s_mov_b64 exec, 1','buffer_store_dwordx4 v[4:7], v1, s[4:7], s52 offen']
        St+=['s_endpgm']
        M=[]
        M+=s.addr_init()
        Mx=[s.O[j] for j in range(NQ)]
        for j in range(NQ):
            M+=[f'v_mov_b32 v{Mx[j]}, 0xff800000', f'v_mov_b32 v{s.Q2[j]+1}, 0']
        M+=['s_mov_b32 s12, 0']
        ML=[f'ds_read_b128 {vr(s.K1[0],4)}, v{s.aK1}', f'ds_read_b32 v{s.K2[0]}, v{s.aK2}', 's_waitcnt lgkmcnt(0)']
        for j in range(NQ):
            S=s.S[j%2]
            ML+=[f'v_mfma_f32_32x32x16_bf16 {vr(S,16)}, {vr(s.K1[0],4)}, {vr(s.Q1[j],4)}, 0',
                 f'v_mfma_f32_32x32x8_bf16 {vr(S,16)}, {vr(s.K2[0],2)}, {vr(s.Q2[j],2)}, {vr(S,16)}', 's_nop 11']
            for i in range(8): ML+=[f'v_max3_f32 v{Mx[j]}, v{S+2*i}, v{S+2*i+1}, v{Mx[j]}']
        ML+=[f'v_add_u32 v{s.aK1}, 2560, v{s.aK1}', f'v_add_u32 v{s.aK2}, 2560, v{s.aK2}',
             's_add_u32 s12, s12, 1', 's_cmp_lt_u32 s12, 64']
        M2=[]
        for j in range(NQ):
            M2+=[f'v_mov_b32 v{T+2}, v{Mx[j]}', 's_nop 1', f'v_permlane32_swap_b32 v{Mx[j]}, v{T+2}', 's_nop 1',
                 f'v_max_f32 v{T+1}, v{Mx[j]}, v{T+2}']
            M2+=s.set_m(j,T+1)
        M2+=s.addr_init()+['s_mov_b32 s20, 1']
        out=[f'.globl {nm}','.p2align 8',f'.type {nm},@function',f'{nm}:']
        out+=P+[f'L_{nm}_restart:']+R+F
        out+=['s_cmp_lg_u32 s20, 0', f's_cbranch_scc1 L_{nm}_nobar']+Bar+[f'L_{nm}_nobar:']
        out+=['s_mov_b32 s12, 0','.p2align 6',f'L_{nm}_loop:']+B+['s_add_u32 s12, s12, 1',f's_cmp_lt_u32 s12, {NI-2}',f's_cbranch_scc1 L_{nm}_loop']
        out+=Lz+E+C+[f'L_{nm}_store:']+St
        out+=[f'L_{nm}_truemax:']+M+[f'L_{nm}_mloop:']+ML+[f's_cbranch_scc1 L_{nm}_mloop']+M2+[f's_branch L_{nm}_restart']
        out+=[f'L_{nm}_end:','s_endpgm']
        tr1=P+R+F+Bar+B+B+Lz+E+C+St
        tr2=P+R+F+Bar+B+Lz+E+C+M+ML+ML+M2+R+F+B+Lz+E+C+St
        probs=check(tr1,nm+'/main')+check(tr2,nm+'/fallback')
        kd=f""".amdhsa_kernel {nm}
  .amdhsa_next_free_vgpr {s.nv}
  .amdhsa_next_free_sgpr 64
  .amdhsa_accum_offset {(s.nv+3)//4*4}
  .amdhsa_group_segment_fixed_size 0
  .amdhsa_kernarg_size 96
  .amdhsa_user_sgpr_count 2
  .amdhsa_user_sgpr_kernarg_segment_ptr 1
  .amdhsa_system_sgpr_workgroup_id_x 1
.end_amdhsa_kernel"""
        launch=f'; @launch kernel={nm} grid=(256,1,1) block=({NW*64},1,1) lds=163840'
        return out,kd,launch,probs
if __name__=='__main__':
    k=K2()
    out,kd,launch,probs=k.gen()
    print(k.nv,len(out))
    for p in probs[:40]: print(p)
```

```python
from asmlib import *
from layout import *
CH=20480; NSLOT=7; NCH=10; RS=336
class K3:
    def __init__(s,name='outproj_kernel',diag=False):
        s.name=name; s.diag=diag
        s.T=2
        s.wa=[12,13]
        s.g=[14,15]
        s.acc=[[16+20*tt+4*ft for ft in range(5)] for tt in range(2)]
        s.W=[[56+20*b+4*ft for ft in range(5)] for b in range(2)]
        s.O=[[96+8*st+4*tt for tt in range(2)] for st in range(20)]
        s.nv=256
    def reads(s,b,kk):
        L=[]
        for ft in range(5):
            for k2 in range(2):
                L.append(f'ds_read_b64_tr_b16 {vr(s.W[b][ft]+2*k2,2)}, v{s.wa[k2]} offset:{ft*32+kk*5120}')
        return L
    def mf(s,b,st):
        return [f'v_mfma_f32_16x16x32_bf16 {vr(s.acc[tt][ft],4)}, {vr(s.W[b][ft],4)}, {vr(s.O[st][tt],4)}, {vr(s.acc[tt][ft],4)}' for ft in range(5) for tt in range(2)]
    def adv(s,c):
        d=CH if c%NSLOT else -(NSLOT-1)*CH
        return [f'v_add_u32 v{r}, {d}, v{r}' if d>0 else f'v_subrev_u32 v{r}, {-d}, v{r}' for r in s.wa]
    def final(s):
        T=s.T; L=[]
        A=16; B=24; G=32
        for rnd in range(2):
            it=T
            L+=[f'v_add_u32 v{it}, {512*rnd}, v0' if rnd else f'v_mov_b32 v{it}, v0',
                f'v_mul_u32_u24 v{T+1}, 6554, v{it}', f'v_lshrrev_b32 v{T+1}, 16, v{T+1}',
                f'v_mul_u32_u24 v{T+2}, 10, v{T+1}', f'v_sub_u32 v{T+2}, v{it}, v{T+2}',
                f'v_mul_u32_u24 v{T+3}, {RS}, v{T+1}', f'v_lshl_add_u32 v{T+3}, v{T+2}, 5, v{T+3}',
                f'v_mul_u32_u24 v{T+4}, 1280, v{T+1}', f'v_lshl_add_u32 v{T+4}, v{T+2}, 4, v{T+4}',
                f'v_lshlrev_b32 v{T+5}, 2, v{T+1}']
            if rnd:
                L+=['s_cmp_ge_u32 s3, 2', f's_cbranch_scc1 L_{s.name}_end']
            L+=[f'buffer_load_dword v{G}, v{T+5}, s[4:7], s40 offen', f'buffer_load_dword v{G+1}, v{T+5}, s[4:7], s41 offen',
                f'ds_read_b128 {vr(A,4)}, v{T+3}', f'ds_read_b128 {vr(A+4,4)}, v{T+3} offset:16',
                f'ds_read_b128 {vr(B,4)}, v{T+3} offset:{64*RS}', f'ds_read_b128 {vr(B+4,4)}, v{T+3} offset:{64*RS+16}',
                's_waitcnt lgkmcnt(0)']
            def rne_pairs(R):
                X=[]
                for i in range(4):
                    X+=[f'v_cvt_pk_bf16_f32 v{R+2*i+1}, v{R+2*i}, v{R+2*i+1}']
                for i in range(4):
                    X+=[f'v_lshlrev_b32 v{R+2*i}, 16, v{R+2*i+1}', f'v_and_b32 v{R+2*i+1}, 0xffff0000, v{R+2*i+1}']
                return X
            L+=rne_pairs(A)+rne_pairs(B)+['s_waitcnt vmcnt(0)']
            for i in range(8): L+=[f'v_mul_f32 v{A+i}, v{G}, v{A+i}', f'v_mul_f32 v{B+i}, v{G+1}, v{B+i}']
            L+=rne_pairs(A)+rne_pairs(B)
            for i in range(8): L+=[f'v_add_f32 v{A+i}, v{A+i}, v{B+i}']
            for i in range(4): L+=[f'v_cvt_pk_bf16_f32 v{36+i}, v{A+2*i}, v{A+2*i+1}']
            L+=[f'buffer_store_dwordx4 {vr(36,4)}, v{T+4}, s[12:15], s42 offen', 's_nop 1']
        return L
    def gen(s):
        nm=s.name; T=s.T
        P=[f's_cmp_ge_u32 s2, 256', f's_cbranch_scc1 L_{nm}_end',
           's_load_dwordx2 s[48:49], s[0:1], 32',
           's_load_dwordx2 s[50:51], s[0:1], 56',
           's_load_dwordx2 s[52:53], s[0:1], 72',
           's_load_dwordx2 s[4:5], s[0:1], 88',
           'v_lshrrev_b32 v1, 6, v0',
           's_and_b32 s16, s2, 7','s_lshr_b32 s17, s2, 3',
           'v_readfirstlane_b32 s3, v1',
           's_lshr_b32 s18, s16, 1','s_lshl_b32 s18, s18, 3','s_and_b32 s19, s17, 7','s_add_u32 s9, s18, s19',
           's_and_b32 s18, s16, 1','s_lshl_b32 s18, s18, 2','s_lshr_b32 s19, s17, 3','s_add_u32 s10, s18, s19',
           's_and_b32 s8, s3, 1','s_bfe_u32 s11, s3, 0x10001',
           f'v_and_b32 v{T}, 63, v0',
           's_lshl_b32 s40, s9, 8', f's_add_u32 s40, s40, {GATE}', 's_add_u32 s41, s40, 8192',
           's_mul_i32 s42, s9, 81920','s_mul_i32 s43, s10, 160','s_add_u32 s42, s42, s43',
           's_waitcnt lgkmcnt(0)',
           's_and_b32 s5, s5, 0xffff', f's_mov_b32 s6, {WS_BYTES}', 's_mov_b32 s7, 0x20000',
           's_mov_b32 s12, s52','s_and_b32 s13, s53, 0xffff','s_mov_b32 s14, 2621440','s_mov_b32 s15, 0x20000',
           's_cmp_ge_u32 s3, 4', f's_cbranch_scc1 L_{nm}_loader']
        C=[]
        C+=[f'v_lshlrev_b32 v{T+1}, 4, v{T}',
            's_lshl_b32 s20, s9, 2','s_lshl_b32 s21, s8, 1','s_add_u32 s20, s20, s21','s_mul_i32 s20, s20, 40960',
            's_mul_i32 s21, s11, 20480','s_add_u32 s20, s20, s21',f's_add_u32 s20, s20, {OBUF}','s_add_u32 s21, s20, 40960']
        for st in range(20):
            for tt in range(2):
                C.append(f'buffer_load_dwordx4 {vr(s.O[st][tt],4)}, v{T+1}, s[4:7], s{20+tt} offen offset:{(st%4)*1024}')
            if st%4==3: C+=['s_add_u32 s20, s20, 4096','s_add_u32 s21, s21, 4096']
        for tt in range(2):
            for ft in range(5):
                for i in range(4): C.append(f'v_mov_b32 v{s.acc[tt][ft]+i}, 0')
        C+=[f'v_lshrrev_b32 v{T+2}, 4, v{T}', f'v_and_b32 v{T+3}, 1, v{T+2}',
            f'v_bfe_u32 v{T+4}, v{T}, 2, 2', f'v_lshl_add_u32 v{T+4}, v{T+2}, 3, v{T+4}',
            f'v_and_b32 v{T+5}, 3, v{T}', f'v_lshlrev_b32 v{T+5}, 3, v{T+5}',
            's_mul_i32 s22, s11, 10240', f'v_add_u32 v{T+5}, s22, v{T+5}']
        for k2 in range(2):
            C+=[f'v_xor_b32 v{T+6}, {k2}, v{T+3}', f'v_lshl_add_u32 v{T+6}, v{T+6}, 2, v{T+4}',
                f'v_mul_u32_u24 v{T+6}, 160, v{T+6}', f'v_add_u32 v{s.wa[k2]}, v{T+6}, v{T+5}']
        M=['s_barrier']+s.reads(0,0)
        for c in range(NCH):
            for kk in range(2):
                st=2*c+kk; b=st%2
                F=s.mf(b,st)
                M+=[f's_waitcnt vmcnt({38-2*st}) lgkmcnt(0)']
                if kk==0:
                    R=s.reads(1-b,1)
                    for i in range(10): M+=[F[i],R[i]]
                elif c<NCH-1:
                    R=s.reads(1-b,0)
                    M+=F[:3]+['s_barrier']+s.adv(c+1)
                    M+=R[:3]+[F[3]]
                    for i in range(4,10): M+=[R[i-1],F[i]]
                    M+=[R[9]]
                else:
                    M+=F
        E=['s_barrier',
           f'v_and_b32 v{T+1}, 15, v{T}', f'v_lshrrev_b32 v{T+2}, 4, v{T}',
           's_lshl_b32 s22, s11, 6','s_lshl_b32 s23, s8, 5','s_add_u32 s22, s22, s23',
           f'v_add_u32 v{T+1}, s22, v{T+1}', f'v_mul_u32_u24 v{T+1}, {RS}, v{T+1}', f'v_lshl_add_u32 v{T+1}, v{T+2}, 4, v{T+1}', 's_nop 1']
        for tt in range(2):
            for ft in range(5):
                E.append(f'ds_write_b128 v{T+1}, {vr(s.acc[tt][ft],4)} offset:{tt*16*RS+ft*64}')
        E+=['s_waitcnt lgkmcnt(0)','s_barrier']
        Ld=['s_cmp_eq_u32 s11, 0','s_cselect_b32 s16, s48, s50','s_cselect_b32 s17, s49, s51','s_and_b32 s17, s17, 0xffff',
            's_mov_b32 s18, 819200','s_mov_b32 s19, 0x20000']
        vm=[16+i for i in range(5)]; vt=[21+i for i in range(5)]
        for i in range(5):
            Ld+=[f'v_add_u32 v{T+1}, {64*i}, v{T}',
                 f'v_mul_u32_u24 v{T+2}, 6554, v{T+1}', f'v_lshrrev_b32 v{T+2}, 16, v{T+2}',
                 f'v_mul_u32_u24 v{T+3}, 10, v{T+2}', f'v_sub_u32 v{T+1}, v{T+1}, v{T+3}',
                 f'v_lshrrev_b32 v{T+3}, 2, v{T+2}', f'v_bfe_u32 v{T+4}, v{T+3}, 1, 1', f'v_xor_b32 v{T+3}, v{T+3}, v{T+4}',
                 f'v_and_b32 v{T+2}, 3, v{T+2}',
                 f'v_lshrrev_b32 v{T+4}, 2, v{T+3}', f'v_mul_u32_u24 v{T+4}, 20, v{T+4}', f'v_and_b32 v{T+5}, 3, v{T+3}',
                 f'v_lshl_add_u32 v{T+4}, v{T+5}, 2, v{T+4}', f'v_add_u32 v{T+4}, v{T+4}, v{T+2}',
                 f'v_mul_u32_u24 v{T+4}, 1280, v{T+4}', f'v_lshl_add_u32 v{vm[i]}, v{T+1}, 4, v{T+4}',
                 f'v_mul_u32_u24 v{T+4}, 20, v{T+3}', f'v_add3_u32 v{T+4}, v{T+4}, v{T+2}, 16',
                 f'v_mul_u32_u24 v{T+4}, 1280, v{T+4}', f'v_lshl_add_u32 v{vt[i]}, v{T+1}, 4, v{T+4}']
        Ld+=['s_mul_i32 s22, s11, 10240','s_mul_i32 s23, s8, 5120','s_add_u32 s22, s22, s23',
             's_mul_i32 s24, s8, 51200','s_add_u32 s24, s24, s43',
             's_mul_i32 s25, s8, 204800','s_add_u32 s25, s25, s43']
        def chunk(c):
            so=(c%NSLOT)*CH; X=[]
            if c<8: X+=[f's_add_u32 s26, s24, {c*102400}']
            else:   X+=[f's_add_u32 s26, s25, {(c-8)*409600}']
            for i in range(5):
                X+=[f's_add_u32 m0, s22, {so+1024*i}','s_nop 0',f'buffer_load_dwordx4 v{(vm if c<8 else vt)[i]}, s[16:19], s26 offen lds']
            return X
        for c in range(NSLOT): Ld+=chunk(c)
        for c in range(NCH):
            rem=(NSLOT-1 if c==0 else min(NCH-1,c+NSLOT-2))-c
            Ld+=[f's_waitcnt vmcnt({rem*5})','s_barrier']
            if c>=1 and c-1+NSLOT<NCH: Ld+=chunk(c-1+NSLOT)
        Ld+=['s_barrier','s_barrier']
        Fn=s.final()
        out=[f'.globl {nm}','.p2align 8',f'.type {nm},@function',f'{nm}:']
        out+=P+C+M+E+[f's_branch L_{nm}_final',f'L_{nm}_loader:']+Ld+[f'L_{nm}_final:']+Fn+[f'L_{nm}_end:','s_endpgm']
        probs=check(P+C+M+E+Fn,nm+'/c')+check(P+Ld+Fn,nm+'/l')
        kd=f""".amdhsa_kernel {nm}
  .amdhsa_next_free_vgpr {s.nv}
  .amdhsa_next_free_sgpr 64
  .amdhsa_accum_offset {(s.nv+3)//4*4}
  .amdhsa_group_segment_fixed_size 0
  .amdhsa_kernarg_size 96
  .amdhsa_user_sgpr_count 2
  .amdhsa_user_sgpr_kernarg_segment_ptr 1
  .amdhsa_system_sgpr_workgroup_id_x 1
.end_amdhsa_kernel"""
        launch=f'; @launch kernel={nm} grid=(256,1,1) block=(512,1,1) lds={NSLOT*CH}'
        return out,kd,launch,probs
```

```python
import os
QIMG   = int(os.environ.get('WSBASE','0'))
KVIMG  = QIMG + 64*64*1280
KMAX   = KVIMG + 33*64*2560
GATE   = KMAX + 16384
OBUF   = GATE + 16384
WS_END = OBUF + 128*40960
WS_BYTES = 268435456
LOG2E = 1.4426950408889634
QSCALE = LOG2E * (20 ** -0.5)
```

```python
import sys, importlib
sys.path.insert(0,'gen')
from layout import *
HEADER=open('gated_mix__grouped_kv_mqa__mha_block__prompt.s.ref').read().split('; Override launch')[0]
def build(kernels, path):
    launches=[];code=[];kds=[];probs=[]
    for k in kernels:
        out,kd,launch,pr=k.gen()
        launches.append(launch); code+=out; kds.append(kd); probs+=pr
    txt=HEADER+"\n".join(launches)+"\n"
    txt+='.amdgcn_target "amdgcn-amd-amdhsa--gfx950"\n.text\n'
    for l in code:
        if l.endswith(':') or l.startswith('.'): txt+=l+"\n"
        else: txt+="    "+l+"\n"
    txt+='.section .rodata,"a"\n'
    for kd in kds: txt+=".p2align 6\n"+kd+"\n"
    open(path,'w').write(txt)
    for p in probs[:50]: print(p)
    print(f"wrote {path}: {len(txt)} bytes, {len(probs)} problems")
if __name__=='__main__':
    from k2 import K2
    which=sys.argv[1]
    if which=='k2':
        ex=sys.argv[2] if len(sys.argv)>2 else ''
        build([K2(diag=True,exper=ex)], f'k2only{ex}.s')
    if which=='k12':
        from k1 import K1
        build([K1(),K2(exper='vzero')], 'k12.s')
    if which=='all':
        from k1 import K1
        from k3 import K3
        build([K1(),K2(exper='vzero'),K3()], 'gated_mix__grouped_kv_mqa__mha_block__prompt.s')
```

```python
from layout import *
NST=12
def stamp(i,on=True):
    return [f's_memtime s[{64+2*i}:{65+2*i}]'] if on else []
def stamp_w(i,on=True):
    return [f's_memtime s[{64+2*i}:{65+2*i}]','s_waitcnt lgkmcnt(0)'] if on else []
def start(on=True):
    if not on: return []
    L=['s_memrealtime s[96:97]','s_memtime s[64:65]']
    for i in range(1,NST): L+=[f's_mov_b32 s{64+2*i}, 0']
    return L
def finish(kidx,nw,wave_sreg,srd='s[4:7]',on=True):
    if not on: return []
    L=['s_waitcnt vmcnt(0)',f's_memtime s[{64+2*(NST-1)}:{65+2*(NST-1)}]','s_memrealtime s[98:99]','s_waitcnt lgkmcnt(0)','s_mov_b64 exec, 1']
    for i in range(1,NST):
        L+=[f's_sub_u32 s100, s{64+2*i}, s64', f'v_mov_b32 v{3+i}, s100']
    L+=['v_mov_b32 v15, s96','v_mov_b32 v16, s98','v_mov_b32 v17, 0','v_mov_b32 v18, 0','v_mov_b32 v19, 0',
        f's_mul_i32 s100, s2, {nw}',f's_add_u32 s100, s100, {wave_sreg}','s_lshl_b32 s100, s100, 6',f's_add_u32 s100, s100, {WS_END+kidx*(1<<20)}',
        'v_mov_b32 v1, 0']
    for k in range(4):
        L+=[f'buffer_store_dwordx4 v[{4+4*k}:{7+4*k}], v1, {srd}, s100 offen offset:{16*k}']
    return L
```

```python
from asmlib import *
from layout import *
import diag as D
import struct
def f2u(f): return struct.unpack('<I',struct.pack('<f',f))[0]
SLOT=39936; XOFF=0; WOFF=16384; EOFF=36864; NSLOT=4; GOFF=NSLOT*SLOT
NCH=10
class K1:
    def __init__(s,name='proj_kernel',diag=False,rot=True,stflag=''):
        s.name=name; s.diag=diag; s.rot=rot; s.stflag=stflag
        s.acc=[16+16*t for t in range(5)]
        s.accE=96
        s.W=[[112+28*b+4*t for t in range(5)] for b in range(3)]
        s.X=[112+28*b+20 for b in range(3)]
        s.G=[112+28*b+24 for b in range(3)]
        s.E=196; s.XE=200
        s.xa=[204+i for i in range(4)]
        s.wa=[208+i for i in range(5)]
        s.ea=213; s.xea=214; s.ga=215; s.gacc=216
        s.T=2
        s.nv=220
    def reads(s,n,var):
        b=n%3; st=n%4; c=n//4
        L=[f'ds_read_b128 {vr(s.X[b],4)}, v{s.xa[st]}']
        for t in range(5):
            for kk in range(2):
                L.append(f'ds_read_b64_tr_b16 {vr(s.W[b][t]+2*kk,2)}, v{s.wa[t]} offset:{(16*st+4*kk)*320}')
        if var=='V': L.append(f'ds_read_b128 {vr(s.G[b],4)}, v{s.ga} offset:{(64*c+16*st)*2}')
        if var in('QK','QV') and st==1:
            L+=[f'ds_read_b64_tr_b16 {vr(s.E,2)}, v{s.ea}', f'ds_read_b64_tr_b16 {vr(s.E+2,2)}, v{s.ea} offset:160',
                f'ds_read_b128 {vr(s.XE,4)}, v{s.xea}']
        return L
    def mfmas(s,n,var):
        b=n%3; L=[]
        for t in range(5):
            a,bb=(vr(s.W[b][t],4),vr(s.X[b],4)) if var!='V' else (vr(s.X[b],4),vr(s.W[b][t],4))
            L.append(f'v_mfma_f32_32x32x16_bf16 {vr(s.acc[t],16)}, {a}, {bb}, {vr(s.acc[t],16)}')
        if var in('QK','QV') and n%4==1:
            a,bb=(vr(s.E,4),vr(s.XE,4)) if var=='QK' else (vr(s.XE,4),vr(s.E,4))
            L.append(f'v_mfma_f32_32x32x16_bf16 {vr(s.accE,16)}, {a}, {bb}, {vr(s.accE,16)}')
        return L
    def advance(s,c,var):
        d=SLOT if c%NSLOT else -(NSLOT-1)*SLOT
        regs=s.xa+s.wa+([s.ea,s.xea] if var in('QK','QV') else [])
        if d>0: return [f'v_add_u32 v{r}, {d}, v{r}' for r in regs]
        return [f'v_subrev_u32 v{r}, {-d}, v{r}' for r in regs]
    def mainloop(s,var):
        L=[]
        gate=var=='V'
        NK=4*NCH
        L+=D.stamp_w(2,s.diag)+['s_barrier']+D.stamp_w(3,s.diag)
        L+=s.reads(0,var)+s.reads(1,var)
        for n in range(NK):
            c=n//4; st=n%4; b=n%3
            M=s.mfmas(n,var)
            nxt=len(s.reads(n+1,var)) if n+1<NK else 0
            L+=[f's_waitcnt lgkmcnt({nxt})']
            dots=[f'v_dot2_f32_bf16 v{s.gacc}, v{s.X[b]+i}, v{s.G[b]+i}, v{s.gacc}' for i in range(4)] if gate else []
            R=s.reads(n+2,var) if n+2<NK else []
            pre=[]
            if st==2 and c<NCH-1:
                pre=['s_barrier']+(D.stamp(4+c//2,False))+s.advance(c+1,var)
            L+=[M[0]]+pre
            per=(len(R)+len(M)-2)//(len(M)-1)
            k=0
            for i,m in enumerate(M[1:]):
                L+=R[k:k+per]; k+=per
                if i<len(dots): L.append(dots[i])
                L.append(m)
            L+=R[k:]
        L+=D.stamp_w(9,s.diag)
        return L
    def epi_qk(s,isK):
        T=s.T; L=[]
        HS=163840 if isK else 81920
        g=lambda o: s.acc[o//4]+4*(o%4)
        L+=[f'v_and_b32 v{T}, 63, v0', f'v_lshlrev_b32 v{T}, 4, v{T}',
            f'v_bfe_u32 v{T+1}, v0, 5, 1', f'v_mul_u32_u24 v{T+1}, {HS}, v{T+1}',
            f'v_and_b32 v{T+2}, 31, v0', f'v_lshl_add_u32 v{T+1}, v{T+2}, 3, v{T+1}', f'v_add_u32 v{T+1}, 1024, v{T+1}',
            's_nop 4']
        Pk=128
        for m in range(4):
            B=Pk+12*m
            if not isK:
                for o in range(5*m,5*m+5):
                    for i in range(0,4,2): L.append(f'v_pk_mul_f32 {vr(g(o)+i,2)}, {vr(g(o)+i,2)}, s[44:45]')
            for pr in range(2):
                oA,oB=5*m+2*pr,5*m+2*pr+1; X=B+4*pr
                L+=[f'v_cvt_pk_bf16_f32 v{X}, v{g(oA)}, v{g(oA)+1}', f'v_cvt_pk_bf16_f32 v{X+1}, v{g(oA)+2}, v{g(oA)+3}',
                    f'v_cvt_pk_bf16_f32 v{X+2}, v{g(oB)}, v{g(oB)+1}', f'v_cvt_pk_bf16_f32 v{X+3}, v{g(oB)+2}, v{g(oB)+3}']
            oE=5*m+4
            L+=[f'v_cvt_pk_bf16_f32 v{B+8}, v{g(oE)}, v{g(oE)+1}', f'v_cvt_pk_bf16_f32 v{B+9}, v{g(oE)+2}, v{g(oE)+3}']
            for pr in range(2):
                X=B+4*pr
                L+=[f'v_permlane32_swap_b32 v{X}, v{X+2}', f'v_permlane32_swap_b32 v{X+1}, v{X+3}']
            L+=[f'buffer_store_dwordx2 {vr(B+8,2)}, v{T+1}, s[4:7], s41 offen {s.stflag}',
                f'buffer_store_dwordx4 {vr(B,4)}, v{T}, s[4:7], s41 offen {s.stflag}',
                f's_add_u32 s41, s41, {HS}',
                f'buffer_store_dwordx4 {vr(B+4,4)}, v{T}, s[4:7], s41 offen {s.stflag}',
                f's_add_u32 s41, s41, {HS}']
        if isK:
            N=112
            for m in range(4):
                sA,sB,sE=N+3*m,N+3*m+1,N+3*m+2
                for (d,os_) in((sA,(5*m,5*m+1)),(sB,(5*m+2,5*m+3)),(sE,(5*m+4,))):
                    first=True
                    for o in os_:
                        for i in range(4):
                            r=g(o)+i
                            L.append(f'v_mul_f32 v{d}, v{r}, v{r}' if first else f'v_fmac_f32 v{d}, v{r}, v{r}'); first=False
            L+=['s_nop 1']
            for m in range(4): L.append(f'v_permlane32_swap_b32 v{N+3*m}, v{N+3*m+1}')
            L+=['s_nop 1']
            for m in range(4): L.append(f'v_add_f32 v{N+3*m}, v{N+3*m}, v{N+3*m+1}')
            for m in range(4): L.append(f'v_add_f32 v{N+3*m}, v{N+3*m}, v{N+3*m+2}')
            for dpp in('quad_perm:[1,0,3,2]','quad_perm:[2,3,0,1]','row_half_mirror','row_mirror'):
                for m in range(4): L.append(f'v_max_f32_dpp v{N+3*m}, v{N+3*m}, v{N+3*m} {dpp} row_mask:0xf bank_mask:0xf')
            for m in range(4): L.append(f'v_mov_b32 v{N+3*m+1}, v{N+3*m}')
            L+=['s_nop 0']
            for m in range(4): L.append(f'v_permlane16_swap_b32 v{N+3*m}, v{N+3*m+1}')
            L+=['s_nop 1']
            for m in range(4): L.append(f'v_max_f32 v{N+3*m}, v{N+3*m}, v{N+3*m+1}')
            L+=[f'v_bfe_u32 v{T+3}, v0, 5, 1', f'v_lshlrev_b32 v{T+3}, 8, v{T+3}',
                's_mov_b32 s42, 1','s_mov_b32 s43, 1','s_mov_b64 exec, s[42:43]']
            for m in range(4): L.append(f'buffer_store_dword v{N+3*m}, v{T+3}, s[4:7], s40 offen offset:{512*m} {s.stflag}')
            L+=['s_mov_b64 exec, -1']
        return L
    def v_addr(s):
        T=s.T
        L=[f'v_and_b32 v{T}, 31, v0', f'v_bfe_u32 v{T+1}, v0, 5, 1', f'v_mul_u32_u24 v{T+1}, 320, v{T+1}', 's_mov_b32 s42, 163840']
        for t in range(5):
            A=T+4+t
            L+=[f'v_add_u32 v{T+2}, {32*t}, v{T}', f'v_mul_u32_u24 v{T+3}, 3277, v{T+2}', f'v_lshrrev_b32 v{T+3}, 16, v{T+3}',
                f'v_mul_u32_u24 v{A}, 20, v{T+3}', f'v_sub_u32 v{T+2}, v{T+2}, v{A}',
                f'v_mul_lo_u32 v{A}, v{T+3}, s42', f'v_lshl_add_u32 v{A}, v{T+2}, 4, v{A}', f'v_add_u32 v{A}, v{A}, v{T+1}']
        return L
    def epi_v(s):
        T=s.T; L=['s_nop 6']
        Pk=112
        for t in range(5):
            A=T+4+t
            for i in range(8):
                L.append(f'v_cvt_pk_bf16_f32 v{Pk+8*t+i}, v{s.acc[t]+2*i}, v{s.acc[t]+2*i+1}')
            L+=[f'buffer_store_dwordx4 {vr(Pk+8*t,4)}, v{A}, s[4:7], s41 offen offset:1280 {s.stflag}',
                f'buffer_store_dwordx4 {vr(Pk+8*t+4,4)}, v{A}, s[4:7], s41 offen offset:1920 {s.stflag}']
        return L
    def epi_gate(s):
        T=s.T; G=s.gacc; nm=s.name
        L=['s_cmp_lg_u32 s10, 12', f's_cbranch_scc1 L_{nm}_end2']
        def rne(r): return [f'v_cvt_pk_bf16_f32 v{r}, v{r}, v{r}', f'v_and_b32 v{r}, 0xffff0000, v{r}']
        L+=[f'v_mov_b32 v{T}, v{G}','s_nop 1',f'v_permlane32_swap_b32 v{G}, v{T}','s_nop 1',f'v_add_f32 v{G}, v{G}, v{T}']
        L+=rne(G)
        L+=[f'v_mul_f32 v{G}, {f2u(-LOG2E):#x}, v{G}', f'v_exp_f32 v{G}, v{G}', 's_nop 0', f'v_add_f32 v{G}, 1.0, v{G}', f'v_rcp_f32 v{G}, v{G}','s_nop 0']
        L+=rne(G)
        L+=[f'v_sub_f32 v{T}, 1.0, v{G}']+rne(T)
        L+=['s_mov_b32 s42, 0','s_mov_b32 s43, -1',
            f'v_cndmask_b32 v{G}, v{G}, v{T}, s[42:43]',
            f'v_and_b32 v{T}, 31, v0', f'v_lshlrev_b32 v{T}, 2, v{T}', f'v_bfe_u32 v{T+1}, v0, 5, 1', f'v_lshl_add_u32 v{T}, v{T+1}, 13, v{T}',
            f's_lshl_b32 s42, s46, 7', f's_add_u32 s42, s42, {GATE}',
            f'buffer_store_dword v{G}, v{T}, s[4:7], s42 offen {s.stflag}']
        return L
    XS=2*SLOT
    def extra_write(s):
        T=s.T
        L=[f'v_lshrrev_b32 v{T}, 6, v0', f'v_and_b32 v{T+1}, 63, v0', f'v_lshlrev_b32 v{T+1}, 4, v{T+1}', f'v_lshl_add_u32 v{T}, v{T}, 12, v{T+1}',
           f'v_add_u32 v{T}, {s.XS}, v{T}']
        for r4 in range(4): L.append(f'ds_write_b128 v{T}, {vr(s.accE+4*r4,4)} offset:{1024*r4}')
        L+=['s_waitcnt lgkmcnt(0)','s_barrier']
        return L
    def extra_epi(s,var):
        T=s.T; L=[]
        A=16
        L+=[f'v_and_b32 v{T+1}, 63, v0', f'v_lshlrev_b32 v{T}, 4, v{T+1}', f'v_add_u32 v{T+2}, {s.XS}, v{T}']
        for w in range(4):
            for r4 in range(4): L.append(f'ds_read_b128 {vr(A+16*w+4*r4,4)}, v{T+2} offset:{4096*w+1024*r4}')
            if w==2: L.append('s_waitcnt lgkmcnt(4)')
        L+=['s_waitcnt lgkmcnt(0)']
        for i in range(16):
            L+=[f'v_add_f32 v{A+i}, v{A+i}, v{A+16+i}', f'v_add_f32 v{A+32+i}, v{A+32+i}, v{A+48+i}']
        for i in range(16): L.append(f'v_add_f32 v{A+i}, v{A+i}, v{A+32+i}')
        X=96
        if var=='QK':
            N=112
            for i in range(6): L.append(f'v_cvt_pk_bf16_f32 v{X+i}, v{A+2*i}, v{A+2*i+1}')
            L+=['s_nop 1',f'v_permlane32_swap_b32 v{X}, v{X+2}', f'v_permlane32_swap_b32 v{X+1}, v{X+3}',
                f'buffer_store_dwordx4 {vr(X,4)}, v{T}, s[4:7], s46 offen {s.stflag}',
                f'v_lshrrev_b32 v{T+1}, 1, v{T}',
                's_mov_b64 exec, 0xffffffff',
                f'buffer_store_dwordx2 {vr(X+4,2)}, v{T+1}, s[4:7], s46 offen offset:1024 {s.stflag}',
                's_mov_b64 exec, -1']
            for i in range(8): L.append(f'v_mul_f32 v{N}, v{A}, v{A}' if i==0 else f'v_fmac_f32 v{N}, v{A+i}, v{A+i}')
            for i in range(4): L.append(f'v_mul_f32 v{N+2}, v{A+8}, v{A+8}' if i==0 else f'v_fmac_f32 v{N+2}, v{A+8+i}, v{A+8+i}')
            L+=[f'v_mov_b32 v{N+1}, v{N}','s_nop 1',f'v_permlane32_swap_b32 v{N}, v{N+1}','s_nop 1',
                f'v_add_f32 v{N}, v{N}, v{N+1}', f'v_add_f32 v{N}, v{N}, v{N+2}','s_nop 1']
            for dpp in('quad_perm:[1,0,3,2]','quad_perm:[2,3,0,1]','row_half_mirror','row_mirror'):
                L+=[f'v_max_f32_dpp v{N}, v{N}, v{N} {dpp} row_mask:0xf bank_mask:0xf','s_nop 1']
            L+=[f'v_mov_b32 v{N+1}, v{N}','s_nop 1',f'v_permlane16_swap_b32 v{N}, v{N+1}','s_nop 1',f'v_max_f32 v{N}, v{N}, v{N+1}',
                f'v_mov_b32 v{N+3}, 0',
                's_mov_b64 exec, 1',
                f'buffer_store_dword v{N}, v{N+3}, s[4:7], s47 offen {s.stflag}']
        else:
            for i in range(8): L.append(f'v_cvt_pk_bf16_f32 v{X+i}, v{A+2*i}, v{A+2*i+1}')
            L+=[f'v_and_b32 v{T}, 31, v0', f'v_bfe_u32 v{T+1}, v0, 5, 1', f'v_mul_u32_u24 v{T+1}, 320, v{T+1}', f'v_lshl_add_u32 v{T}, v{T}, 4, v{T+1}',
                's_mov_b32 s42, 0x000fffff','s_mov_b32 s43, 0x000fffff','s_mov_b64 exec, s[42:43]',
                f'buffer_store_dwordx4 {vr(X,4)}, v{T}, s[4:7], s46 offen offset:1280 {s.stflag}',
                f'buffer_store_dwordx4 {vr(X+4,4)}, v{T}, s[4:7], s46 offen offset:1920 {s.stflag}']
        return L
    def loader(s):
        T=s.T; L=[]; nm=s.name
        vx=[16,17]; vw=[18+i for i in range(5)]; ve=23
        L+=[f'v_and_b32 v{T}, 63, v0', f'v_lshrrev_b32 v{T+1}, 3, v{T}', f'v_mul_u32_u24 v{T+1}, 1280, v{T+1}',
            f'v_and_b32 v{T+2}, 7, v{T}', f'v_lshrrev_b32 v{T+3}, 4, v{T}', f'v_xor_b32 v{T+2}, v{T+2}, v{T+3}',
            f'v_lshl_add_u32 v{vx[0]}, v{T+2}, 4, v{T+1}', f'v_xor_b32 v{T+2}, 4, v{T+2}', f'v_lshl_add_u32 v{vx[1]}, v{T+2}, 4, v{T+1}',
            's_mul_i32 s26, s46, 40960',
            's_lshl_b32 s31, s8, 12']
        def xpart(c):
            so=(c%NSLOT)*SLOT; C=['s_lshl_b32 s36, s11, 7','s_add_u32 s36, s36, s26']
            for i in range(4):
                C+=[f's_add_u32 m0, s31, {so+1024*i}', f's_add_u32 s37, s36, {i*8*1280}',
                    f'buffer_load_dwordx4 v{vx[i%2]}, s[12:15], s37 offen lds']
            return C
        def wpart(c):
            so=(c%NSLOT)*SLOT; C=['s_mul_i32 s36, s11, s29','s_add_u32 s36, s36, s27']
            for i in range(5):
                C+=[f's_add_u32 m0, s32, {so+1024*i}', 's_nop 0',
                    f'buffer_load_dwordx4 v{vw[i]}, s[16:19], s36 offen lds']
            C+=['s_mul_i32 s36, s11, s30','s_add_u32 s36, s36, s28',
                f's_mul_i32 s37, s39, {so}', 's_add_u32 m0, s33, s37', 's_mov_b64 exec, s[34:35]',
                f'buffer_load_dwordx4 v{ve}, s[20:23], s36 offen lds', 's_mov_b64 exec, -1',
                's_add_u32 s11, s11, 1','s_cmp_eq_u32 s11, 10','s_cselect_b32 s11, 0, s11']
            return C
        L+=D.stamp_w(2,s.diag)+xpart(0)
        L+=['s_mul_i32 s25, s8, 320']
        for i in range(5):
            L+=[f'v_add_u32 v{T+1}, s25, v{T}']+([f'v_add_u32 v{T+1}, {64*i}, v{T+1}'] if i else [])+[
                f'v_mul_u32_u24 v{T+2}, 3277, v{T+1}', f'v_lshrrev_b32 v{T+2}, 16, v{T+2}',
                f'v_mul_u32_u24 v{T+3}, 20, v{T+2}', f'v_sub_u32 v{T+1}, v{T+1}, v{T+3}',
                f'v_mul_lo_u32 v{vw[i]}, v{T+2}, s24', f'v_lshl_add_u32 v{vw[i]}, v{T+1}, 4, v{vw[i]}']
        L+=[f'v_lshlrev_b32 v{ve}, 4, v{T}',
            's_lshl_b32 s29, s24, 6',
            's_mul_i32 s32, s8, 5120', f's_add_u32 s32, s32, {WOFF}',
            's_mov_b32 s34, -1','s_mov_b32 s35, 0xff',
            's_mul_i32 s28, s8, 640',
            f's_add_u32 s33, s28, {EOFF}', f's_add_u32 s37, s28, {GOFF}', 's_and_b32 s36, s8, 1', 's_mul_i32 s36, s36, 640',
            's_cmp_lt_u32 s10, 8',
            's_cselect_b32 s30, 2560, 0','s_cselect_b32 s39, 1, 0','s_cselect_b32 s33, s33, s37','s_cselect_b32 s28, s28, s36']
        L+=wpart(0)+xpart(1)+wpart(1)+D.stamp_w(3,s.diag)
        for c in range(NCH):
            rem=1 if c<NCH-1 else 0
            L+=[f's_waitcnt vmcnt({rem*10})','s_barrier']
            if c+2<NCH: L+=xpart(c+2)+wpart(c+2)
        return L
    def gen(s):
        nm=s.name; T=s.T
        P=[f's_cmp_ge_u32 s2, 256', f's_cbranch_scc1 L_{nm}_end',
           's_load_dwordx4 s[48:51], s[0:1], 0',
           's_load_dwordx4 s[52:55], s[0:1], 16',
           's_load_dwordx2 s[56:57], s[0:1], 48',
           's_load_dwordx2 s[58:59], s[0:1], 64',
           's_load_dwordx2 s[4:5], s[0:1], 88']+D.start(s.diag)+[
           'v_lshrrev_b32 v1, 6, v0',
           's_and_b32 s16, s2, 7','s_lshr_b32 s17, s2, 3',
           'v_readfirstlane_b32 s3, v1',
           's_and_b32 s18, s16, 1','s_lshl_b32 s18, s18, 3','s_and_b32 s19, s17, 7','s_add_u32 s9, s18, s19',
           's_lshr_b32 s18, s16, 1','s_lshl_b32 s18, s18, 2','s_lshr_b32 s20, s17, 3','s_add_u32 s10, s18, s20',
           's_mul_i32 s20, s20, 5','s_add_u32 s20, s20, 1','s_lshr_b32 s20, s20, 1','s_add_u32 s11, s19, s20',
           's_sub_u32 s20, s11, 10','s_cmp_ge_u32 s11, 10','s_cselect_b32 s11, s20, s11']+([] if s.rot else ['s_mov_b32 s11, 0'])+[
           's_and_b32 s8, s3, 3',
           's_lshl_b32 s46, s9, 2','s_add_u32 s46, s46, s8',
           's_mov_b32 s14, 2621440','s_mov_b32 s15, 0x20000', f's_mov_b32 s6, {WS_BYTES}', 's_mov_b32 s7, 0x20000',
           's_mov_b32 s18, 819200','s_mov_b32 s24, 1280','s_mov_b32 s19, 0x20000','s_mov_b32 s23, 0x20000',
           's_waitcnt lgkmcnt(0)',
           's_mov_b32 s12, s48','s_and_b32 s13, s49, 0xffff',
           's_and_b32 s5, s5, 0xffff',
           's_cmp_lt_u32 s10, 4',
           's_cselect_b32 s16, s50, s56','s_cselect_b32 s17, s51, s57','s_cselect_b32 s18, s18, 2457600','s_cselect_b32 s24, s24, 3840',
           's_cselect_b32 s20, s52, s54','s_cselect_b32 s21, s53, s55',
           's_cselect_b32 s27, 0, 4','s_and_b32 s17, s17, 0xffff',
           's_mov_b32 s22, 25600',
           's_cmp_lt_u32 s10, 8',
           's_cselect_b32 s20, s20, s58','s_cselect_b32 s21, s21, s59','s_cselect_b32 s22, s22, 1280',
           's_and_b32 s21, s21, 0xffff',
           's_sub_u32 s27, s10, s27','s_mul_i32 s27, s27, 320',
           ]+D.stamp_w(1,s.diag)+['s_cmp_lt_u32 s3, 4', f's_cbranch_scc1 L_{nm}_compute']
        fin=D.finish(0,8,'s3',on=s.diag)
        exb=['s_and_b32 s25, s10, 3','s_lshl_b32 s26, s9, 2','s_add_u32 s25, s25, s26',
             's_mul_i32 s46, s25, 2560', f's_add_u32 s46, s46, {KVIMG}', 's_lshl_b32 s47, s25, 2', f's_add_u32 s47, s47, {KMAX}']
        Ld=s.loader()+['s_cmp_ge_u32 s10, 8',f's_cbranch_scc1 L_{nm}_ldend','s_barrier','s_cmp_lg_u32 s8, 0',f's_cbranch_scc1 L_{nm}_ldend']+exb
        C=[]
        C+=[f'v_and_b32 v{T}, 31, v0', f'v_bfe_u32 v{T+1}, v0, 5, 1',
            f'v_bfe_u32 v{T+2}, v0, 1, 3', f'v_xor_b32 v{T+2}, v{T+2}, v{T+1}',
            f'v_lshlrev_b32 v{T+3}, 7, v{T}', 's_lshl_b32 s25, s8, 12', f'v_add_u32 v{T+4}, s25, v{T+3}']
        for st in range(4):
            C+=[f'v_xor_b32 v{T+5}, {2*st}, v{T+2}', f'v_lshl_add_u32 v{s.xa[st]}, v{T+5}, 4, v{T+4}']
        C+=['s_and_b32 s25, s10, 3','s_lshl_b32 s26, s25, 12','s_lshl_b32 s28, s8, 1',
            f'v_add_u32 v{T+4}, s26, v{T+3}', f'v_xor_b32 v{T+5}, s28, v{T+2}', f'v_lshl_add_u32 v{s.xea}, v{T+5}, 4, v{T+4}']
        C+=[f'v_bfe_u32 v{T+3}, v0, 2, 2', f'v_lshl_add_u32 v{T+3}, v{T+1}, 3, v{T+3}',
            f'v_and_b32 v{T+4}, 3, v0', f'v_bfe_u32 v{T+5}, v0, 4, 1', f'v_lshl_add_u32 v{T+4}, v{T+5}, 2, v{T+4}',
            's_lshl_b32 s28, s8, 4', f'v_add_u32 v{T+5}, s28, v{T+3}', f'v_mul_u32_u24 v{T+5}, 40, v{T+5}',
            f'v_lshl_add_u32 v{s.ea}, v{T+4}, 3, v{T+5}', f'v_add_u32 v{s.ea}, {EOFF}, v{s.ea}',
            f'v_mul_u32_u24 v{T+3}, 320, v{T+3}', f'v_add_u32 v{T+3}, {WOFF}, v{T+3}',
            's_lshl_b32 s28, s11, 7', f's_add_u32 s28, s28, {GOFF}',
            f'v_lshlrev_b32 v{s.ga}, 4, v{T+1}', f'v_add_u32 v{s.ga}, s28, v{s.ga}']
        for t in range(5):
            for i in range(16): C.append(f'v_mov_b32 v{s.acc[t]+i}, 0')
        for i in range(16): C.append(f'v_mov_b32 v{s.accE+i}, 0')
        C.append(f'v_mov_b32 v{s.gacc}, 0')
        Cnat=[]; Cperm=[]
        for t in range(5):
            Cnat+=[f'v_add_u32 v{T+5}, {8*t}, v{T+4}', f'v_lshl_add_u32 v{s.wa[t]}, v{T+5}, 3, v{T+3}']
            Cperm+=[f'v_add_u32 v{T+5}, {8*t}, v{T+4}',
                    f'v_mul_u32_u24 v{T+6}, 6554, v{T+5}', f'v_lshrrev_b32 v{T+6}, 16, v{T+6}',
                    f'v_mul_u32_u24 v{T+6}, 10, v{T+6}', f'v_sub_u32 v{T+7}, v{T+5}, v{T+6}',
                    f'v_lshlrev_b32 v{T+7}, 2, v{T+7}',
                    f'v_lshrrev_b64 {vr(T+8,2)}, v{T+7}, s[60:61]', f'v_and_b32 v{T+8}, 15, v{T+8}',
                    f'v_add_u32 v{T+5}, v{T+6}, v{T+8}', f'v_lshl_add_u32 v{s.wa[t]}, v{T+5}, 3, v{T+3}']
        Cperm=['s_mov_b32 s60, 0x87653210','s_mov_b32 s61, 0x94']+Cperm
        C+=[f's_mov_b32 s44, {f2u(QSCALE):#x}', f's_mov_b32 s45, {f2u(QSCALE):#x}']
        disp=['s_cmp_lt_u32 s10, 4', f's_cbranch_scc1 L_{nm}_QK','s_cmp_lt_u32 s10, 8', f's_cbranch_scc1 L_{nm}_QV',
              's_cmp_lt_u32 s10, 12', f's_cbranch_scc1 L_{nm}_K']
        baseQ=['s_mul_i32 s41, s10, 655360','s_mul_i32 s42, s46, 1280','s_add_u32 s41, s41, s42',f's_add_u32 s41, s41, {QIMG}']
        baseK=['s_sub_u32 s42, s10, 8','s_lshl_b32 s42, s42, 3','s_add_u32 s42, s42, 1',
               's_mul_i32 s41, s42, 163840','s_mul_i32 s43, s46, 2560','s_add_u32 s41, s41, s43',f's_add_u32 s41, s41, {KVIMG}',
               's_lshl_b32 s40, s42, 8','s_lshl_b32 s43, s46, 2','s_add_u32 s40, s40, s43',f's_add_u32 s40, s40, {KMAX}']
        baseV=['s_sub_u32 s42, s10, 12','s_lshl_b32 s42, s42, 3','s_add_u32 s42, s42, 1',
               's_mul_i32 s41, s42, 163840','s_mul_i32 s43, s46, 2560','s_add_u32 s41, s41, s43',f's_add_u32 s41, s41, {KVIMG}']
        varV=Cnat+baseV+s.v_addr()+s.mainloop('V')+s.epi_v()+s.epi_gate()+[f'L_{nm}_end2:']+fin+['s_endpgm']
        varQK=Cperm+baseQ+s.mainloop('QK')+s.extra_write()+s.epi_qk(False)+fin+['s_endpgm']
        varQV=Cperm+baseQ+s.mainloop('QV')+s.extra_write()+s.epi_qk(False)+fin+['s_endpgm']
        varK=Cperm+baseK+s.mainloop('K')+s.epi_qk(True)+fin+['s_endpgm']
        out=[f'.globl {nm}','.p2align 8',f'.type {nm},@function',f'{nm}:']
        out+=P+Ld
        out+=['s_cmp_lt_u32 s10, 4',f's_cbranch_scc1 L_{nm}_exK']+s.extra_epi('QV')+[f's_branch L_{nm}_ldend',f'L_{nm}_exK:']+s.extra_epi('QK')
        out+=[f'L_{nm}_ldend:']+fin+[f'L_{nm}_end:','s_endpgm']
        out+=[f'L_{nm}_compute:']+C+disp+varV+[f'L_{nm}_QK:']+varQK+[f'L_{nm}_QV:']+varQV+[f'L_{nm}_K:']+varK
        probs=[]
        for n,v in(('V',varV),('QK',varQK),('QV',varQV),('K',varK)): probs+=check(P+C+v,nm+'/'+n)
        probs+=check(P+Ld+s.extra_epi('QV'),nm+'/ldE1')+check(P+Ld+s.extra_epi('QK'),nm+'/ldE2')
        probs=[p for p in probs if 'lgkmcnt overflow' not in p]
        kd=f""".amdhsa_kernel {nm}
  .amdhsa_next_free_vgpr {s.nv}
  .amdhsa_next_free_sgpr 102
  .amdhsa_accum_offset {(s.nv+3)//4*4}
  .amdhsa_group_segment_fixed_size 0
  .amdhsa_kernarg_size 96
  .amdhsa_user_sgpr_count 2
  .amdhsa_user_sgpr_kernarg_segment_ptr 1
  .amdhsa_system_sgpr_workgroup_id_x 1
.end_amdhsa_kernel"""
        launch=f'; @launch kernel={nm} grid=(256,1,1) block=(512,1,1) lds={GOFF+2560}'
        return out,kd,launch,probs
if __name__=='__main__':
    k=K1()
    out,kd,launch,probs=k.gen()
    print(k.nv,len(out))
    for p in probs[:40]: print(p)
```

```python
from asmlib import *
from layout import *
import diag as D
import struct
def f2u(f): return struct.unpack('<I',struct.pack('<f',f))[0]

class K2:
    def __init__(s, NQ=2, U=8, name='attn_kernel', diag=False, exper='', prio=True, rot=True, pref=True, stflag=''):
        s.NQ=NQ; s.U=U; s.name=name; s.diag=diag; s.exper=exper; s.prio=prio; s.rot=rot; s.pref=pref; s.stflag=stflag
        s.NW=16//NQ
        r=4
        s.aK1=1; s.aK2=2; s.aV=3
        s.Q1=[];s.Q2=[]
        for j in range(NQ): s.Q1.append(r); r+=4
        for j in range(NQ): s.Q2.append(r); r+=2
        r=(r+3)//4*4
        s.K1=[r,r+4]; r+=8
        s.K2=[r,r+2]; r+=4
        s.V=[r,r+8]; r+=16
        s.P=[r,r+8]; r+=16
        s.S=[r,r+16]; r+=32
        s.O=[]
        for j in range(NQ): s.O.append(r); r+=16
        s.T=r; r+=8
        s.L16=r; r+=1
        r=(r+3)//4*4
        s.DUM=r; r+=4
        s.nv=r
    def qk(s,S,kb,j):
        return [f'v_mfma_f32_32x32x8_bf16 {vr(S,16)}, {vr(s.K2[kb],2)}, {vr(s.Q2[j],2)}, 0',
                f'v_mfma_f32_32x32x16_bf16 {vr(S,16)}, {vr(s.K1[kb],4)}, {vr(s.Q1[j],4)}, {vr(S,16)}']
    def pv(s,j,vb,P):
        return [f'v_mfma_f32_32x32x16_bf16 {vr(s.O[j],16)}, {vr(s.V[vb],4)}, {vr(P,4)}, {vr(s.O[j],16)}',
                f'v_mfma_f32_32x32x16_bf16 {vr(s.O[j],16)}, {vr(s.V[vb]+4,4)}, {vr(P+4,4)}, {vr(s.O[j],16)}']
    def dma(s):
        NW=s.NW
        return ['s_mov_b32 m0, s24', f's_add_u32 s24, s24, {NW*1024}',
                f'buffer_load_dwordx4 v{s.L16}, s[4:7], s23 offen lds',
                f's_add_u32 s23, s23, {NW*1024}', 's_cmp_ge_u32 s23, s36', 's_cselect_b32 s37, 163840, 0', 's_sub_u32 s23, s23, s37']
    def slot(s, t, j, toff, first=False, last=False, nok=False, extra=None):
        NQ=s.NQ; L=[]
        n=t*NQ+j
        Sc=s.S[n%2]; Sn=s.S[(n+1)%2]; Pc=s.P[n%2]; Pp=s.P[(n-1)%2]
        jn=(j+1)%NQ; tn=t+(1 if j==NQ-1 else 0)
        jp=(j-1)%NQ; tp=t-(1 if j==0 else 0)
        q=s.qk(Sn,tn%2,jn) if not last else [None,None]
        p=s.pv(jp,tp%2,Pp) if not first else [None,None]
        mf=[[x] if x else [] for x in q+p]
        pre=[[],[],[],[]]; post=[[],[],[],[]]
        if j==NQ-1 and not last:
            pre[0].append('s_waitcnt lgkmcnt(2)' if NQ==2 else 's_waitcnt lgkmcnt(0)')
        if j==NQ-1 and not nok:
            o=(toff+2)*2560
            post[0].append(f'ds_read_b128 {vr(s.K1[t%2],4)}, v{s.aK1} offset:{o}')
            post[1].append(f'ds_read_b32 v{s.K2[t%2]}, v{s.aK2} offset:{o}')
        if j==0:
            o=toff*2560
            post[0]+= ['s_mov_b64 exec, s[14:15]',
                       f'ds_read_b128 {vr(s.V[t%2],4)}, v{s.aV} offset:{o}',
                       f'ds_read_b128 {vr(s.V[t%2]+4,4)}, v{s.aV} offset:{o+640}',
                       's_mov_b64 exec, -1']
        if j==1:
            cnt = 2 if (NQ==2 and not nok) else 0
            pre[2].append(f's_waitcnt lgkmcnt({cnt})')
        if extra:
            post[2]+=extra[0]; post[3]+=extra[1]
        va=[]
        for i in range(16):
            va.append(f'v_exp_f32 v{Sc+i}, v{Sc+i}')
            if i>=2 and i%2==0:
                va.append(f'v_cvt_pk_bf16_f32 v{Pc+(i-2)//2}, v{Sc+i-2}, v{Sc+i-1}')
        head=[va[0]]+([f'v_cvt_pk_bf16_f32 v{Pp+7}, v{Sn+14}, v{Sn+15}'] if not first else [])
        va=va[1:]
        cuts=[0,5,11,17,len(va)]
        L+=head
        for k in range(4):
            L+=pre[k]+mf[k]+post[k]+va[cuts[k]:cuts[k+1]]
        if 'noexp' in s.exper: L=[l.replace('v_exp_f32','v_mov_b32') for l in L]
        if 'nolds' in s.exper: L=[l for l in L if not l.startswith('ds_read')]
        return L
    def tiles(s, n, first=False, last=False, extras=None):
        L=[]; k=0
        for tt in range(n):
            for j in range(s.NQ):
                ex=extras[k] if extras and k<len(extras) else None
                L+=s.slot(tt,j,tt, first=(first and k==0), last=(last and tt==n-1 and j==s.NQ-1), nok=(last and tt>=n-2), extra=ex)
                k+=1
        return L
    def adv(s):
        a=s.U*2560
        return [f'v_add_u32 v{s.aK1}, {a}, v{s.aK1}', f'v_add_u32 v{s.aK2}, {a}, v{s.aK2}', f'v_add_u32 v{s.aV}, {a}, v{s.aV}']
    def addr_init(s):
        T=s.T
        return [f'v_and_b32 v{T}, 63, v0',
                f'v_lshlrev_b32 v{s.aK1}, 4, v{T}',
                f'v_and_b32 v{T+1}, 31, v0',
                f'v_bfe_u32 v{T+2}, v0, 5, 1',
                f'v_lshlrev_b32 v{s.aK2}, 3, v{T+1}',
                f'v_lshl_add_u32 v{s.aK2}, v{T+2}, 2, v{s.aK2}',
                f'v_add_u32 v{s.aK2}, 1024, v{s.aK2}',
                f'v_mul_u32_u24 v{s.aV}, 320, v{T+2}',
                f'v_lshl_add_u32 v{s.aV}, v{T+1}, 4, v{s.aV}',
                f'v_add_u32 v{s.aV}, 1280, v{s.aV}']
    def set_m(s, j, m):
        T=s.T+4
        return [f'v_and_b32 v{T}, 0xffff0000, v{m}',
                f'v_sub_f32 v{T+1}, v{m}, v{T}',
                f'v_and_b32 v{T+2}, 0xffff0000, v{T+1}',
                f'v_sub_f32 v{T+1}, v{T+1}, v{T+2}',
                f'v_lshrrev_b32 v{T}, 16, v{T}',
                f'v_or_b32 v{T}, v{T}, v{T+2}',
                f'v_lshrrev_b32 v{T+1}, 16, v{T+1}',
                f'v_xor_b32 v{T}, 0x80008000, v{T}',
                f'v_xor_b32 v{T+1}, 0x8000, v{T+1}',
                f'v_cndmask_b32 v{s.Q2[j]+1}, v{T}, v{T+1}, s[16:17]']
    def gen(s):
        NQ=s.NQ; NW=s.NW; U=s.U; T=s.T; nm=s.name
        ND=160//NW
        n0=((U+1)*2560+1280+NW*1024-1)//(NW*1024)
        P=[]
        P+=[f's_cmp_ge_u32 s2, 256', f's_cbranch_scc1 L_{nm}_end',
            's_load_dwordx2 s[4:5], s[0:1], 88',
            's_load_dwordx2 s[48:49], s[0:1], 32', 's_load_dwordx2 s[50:51], s[0:1], 56']+D.start(s.diag)+[
            'v_lshrrev_b32 v1, 6, v0',
            's_and_b32 s16, s2, 7', 's_lshr_b32 s17, s2, 3',
            'v_readfirstlane_b32 s8, v1',
            's_and_b32 s10, s17, 3', 's_lshr_b32 s18, s17, 2', 's_lshl_b32 s18, s18, 3', 's_add_u32 s9, s18, s16',
            's_lshl_b32 s38, s17, 1', 's_lshl_b32 s39, s10, 3',
            's_sub_u32 s11, s9, 31', 's_cmp_lt_u32 s9, 32', 's_cselect_b32 s11, 0, s11',
            's_cselect_b32 s38, s38, s39',
            's_mul_i32 s38, s38, 5120' if s.rot else 's_mov_b32 s38, 0',
            's_mov_b32 s39, s17']
        P+=s.addr_init()+[f'v_mov_b32 v{s.L16}, v{s.aK1}']
        P+=[f's_lshl_b32 s21, s10, 4', f's_mul_i32 s22, s8, {NQ}', 's_add_u32 s21, s21, s22',
            's_lshl_b32 s22, s9, 6', 's_add_u32 s22, s22, s21', 's_mul_i32 s22, s22, 1280', f's_add_u32 s22, s22, {QIMG}',
            f's_mul_i32 s23, s11, 163840', f's_add_u32 s23, s23, {KVIMG}', 's_add_u32 s36, s23, 163840',
            's_lshl_b32 s24, s8, 10', 's_add_u32 s23, s23, s24', 's_add_u32 s23, s23, s38',
            's_cmp_ge_u32 s23, s36', 's_cselect_b32 s37, 163840, 0', 's_sub_u32 s23, s23, s37',
            f's_lshl_b32 s25, s11, 8', f's_add_u32 s25, s25, {KMAX}',
            f'v_lshrrev_b32 v{T+3}, 2, v{s.aK1}',
            's_waitcnt lgkmcnt(0)',
            's_and_b32 s5, s5, 0xffff', f's_mov_b32 s6, {WS_BYTES}', 's_mov_b32 s7, 0x20000']+D.stamp_w(1,s.diag)
        P+=[f'buffer_load_dword v{T}, v{T+3}, s[4:7], s25 offen']
        for j in range(NQ):
            P+=[f'buffer_load_dwordx4 {vr(s.Q1[j],4)}, v{s.aK1}, s[4:7], s22 offen offset:{j*1280}',
                f'buffer_load_dword v{s.Q2[j]}, v{s.aK2}, s[4:7], s22 offen offset:{j*1280}']
        for i in range(n0): P+=s.dma()
        P+=['s_mov_b32 s14, 0x000fffff', 's_mov_b32 s15, 0x000fffff',
            's_mov_b32 s16, 0', 's_mov_b32 s17, -1', 's_mov_b32 s20, 0',
            's_mov_b32 s18, 0x00100000','s_mov_b32 s19, 0x00100000']
        for b in range(2):
            P+=[f'v_mov_b32 v{s.K2[b]+1}, 0x3f803f80']
            for i in range(8): P+=[f'v_mov_b32 v{s.V[b]+i}, 0']
        P+=['s_mov_b64 exec, s[18:19]']
        for b in range(2):
            for i in range(8): P+=[f'v_mov_b32 v{s.V[b]+i}, 0x3f803f80']
        P+=['s_mov_b64 exec, -1']
        P+=['s_mov_b32 s40, s48','s_and_b32 s41, s49, 0xffff','s_mov_b32 s42, 819200','s_mov_b32 s43, 0x20000',
            's_mov_b32 s44, s50','s_and_b32 s45, s51, 0xffff','s_mov_b32 s46, 819200','s_mov_b32 s47, 0x20000',
            f's_mul_i32 s52, s39, {NW}','s_add_u32 s52, s52, s8', f's_mul_i32 s52, s52, {819200//(32*NW)}']
        P+=D.stamp_w(2,s.diag)+[f's_waitcnt vmcnt({n0+2*NQ})']
        P+=[f'v_max_f32_dpp v{T}, v{T}, v{T} quad_perm:[1,0,3,2] row_mask:0xf bank_mask:0xf', 's_nop 1',
            f'v_max_f32_dpp v{T}, v{T}, v{T} quad_perm:[2,3,0,1] row_mask:0xf bank_mask:0xf', 's_nop 1',
            f'v_max_f32_dpp v{T}, v{T}, v{T} row_half_mirror row_mask:0xf bank_mask:0xf', 's_nop 1',
            f'v_max_f32_dpp v{T}, v{T}, v{T} row_mirror row_mask:0xf bank_mask:0xf', 's_nop 1',
            f'v_readlane_b32 s26, v{T}, 0', f'v_readlane_b32 s27, v{T}, 16', f'v_readlane_b32 s28, v{T}, 32', f'v_readlane_b32 s29, v{T}, 48',
            's_nop 1',
            's_max_u32 s26, s26, s27', 's_max_u32 s28, s28, s29', 's_max_u32 s26, s26, s28',
            f's_waitcnt vmcnt({n0})']+D.stamp_w(3,s.diag)
        for j in range(NQ):
            P+=[f'v_mov_b32 v{T+1}, 0']
            for i in range(4): P+=[f'v_dot2_f32_bf16 v{T+1}, v{s.Q1[j]+i}, v{s.Q1[j]+i}, v{T+1}']
            P+=[f'v_dot2_f32_bf16 v{T+1}, v{s.Q2[j]}, v{s.Q2[j]}, v{T+1}', 's_nop 2',
                f'v_mov_b32 v{T+2}, v{T+1}', 's_nop 1',
                f'v_permlane32_swap_b32 v{T+1}, v{T+2}', 's_nop 1',
                f'v_add_f32 v{T+1}, v{T+1}, v{T+2}',
                f'v_mul_f32 v{T+1}, s26, v{T+1}',
                f'v_sqrt_f32 v{T+1}, v{T+1}', 's_nop 0',
                f'v_mul_f32 v{T+1}, {f2u(1.03):#x}, v{T+1}',
                f'v_add_f32 v{T+1}, {f2u(1e-3):#x}, v{T+1}',
                f'v_and_b32 v{T+1}, 0xffff0000, v{T+1}']
            P+=s.set_m(j,T+1)
        P+=['s_waitcnt vmcnt(0)', 's_barrier']+D.stamp_w(4,s.diag)
        if s.prio: P+=['s_setprio 3']
        R=[]
        R+=[f'ds_read_b128 {vr(s.K1[0],4)}, v{s.aK1}', f'ds_read_b32 v{s.K2[0]}, v{s.aK2}',
            f'ds_read_b128 {vr(s.K1[1],4)}, v{s.aK1} offset:2560', f'ds_read_b32 v{s.K2[1]}, v{s.aK2} offset:2560']
        for j in range(NQ):
            for i in range(16): R+=[f'v_mov_b32 v{s.O[j]+i}, 0']
        R+=['s_waitcnt lgkmcnt(2)']+s.qk(s.S[0],0,0)+['s_waitcnt lgkmcnt(0)', 's_nop 10']
        rem=ND-n0
        ex=[]
        k=0
        while k<rem:
            a=s.dma() if k<rem else []; b=s.dma() if k+1<rem else []
            ex.append((a,b)); k+=2
        F=s.tiles(U,first=True,extras=ex)+s.adv()
        F2=s.tiles(U,first=True)+s.adv()
        Bar=['s_waitcnt vmcnt(0)','s_barrier']+D.stamp_w(5,s.diag)
        NI=64//U
        B=s.tiles(U)+s.adv()
        pf=[]
        if s.pref:
            nb=819200//(32*NW)
            for srd in ('s[40:43]','s[44:47]'):
                for o in range(0,nb,1024):
                    pf.append(([f'buffer_load_dwordx4 {vr(s.DUM,4)}, v{s.L16}, {srd}, s52 offen offset:{o}'],[]))
        Lz=s.tiles(U,last=True,extras=pf)
        n=U*NQ-1
        E=['s_nop 0', f'v_cvt_pk_bf16_f32 v{s.P[n%2]+7}, v{s.S[n%2]+14}, v{s.S[n%2]+15}', 's_nop 1']+s.pv(NQ-1,(U-1)%2,s.P[n%2])+['s_nop 11']
        Lr=[s.S[0]+j for j in range(NQ)]
        Lt=[s.S[1]+j for j in range(NQ)]
        E+=['s_mov_b64 s[30:31], 0']+D.stamp_w(6,s.diag)
        for j in range(NQ):
            E+=[f'v_mov_b32 v{Lr[j]}, v{s.O[j]+8}', f'v_mov_b32 v{Lt[j]}, v{s.O[j]+8}']
        E+=['s_nop 1']
        for j in range(NQ):
            E+=[f'v_permlane32_swap_b32 v{Lt[j]}, v{Lr[j]}']
        E+=['s_nop 1', f's_mov_b32 s32, {f2u(2.0**-60):#x}']
        for j in range(NQ):
            E+=[f'v_cmp_nle_f32 vcc, s32, v{Lr[j]}', 's_or_b64 s[30:31], s[30:31], vcc']
        C=['s_cmp_lg_u32 s20, 0' if not s.exper.startswith('no') else 's_cmp_eq_u32 s20, 0', f's_cbranch_scc1 L_{nm}_store',
           's_cmp_lg_u64 s[30:31], 0', f's_cbranch_scc1 L_{nm}_truemax']
        St=[]
        A1=s.aK1; A2=s.aK2
        St+=[f'v_bfe_u32 v{T}, v0, 4, 1', f'v_mul_u32_u24 v{A2}, 40960, v{T}',
             f'v_and_b32 v{T}, 15, v0', f'v_lshl_add_u32 v{A2}, v{T}, 4, v{A2}',
             f'v_bfe_u32 v{T}, v0, 5, 1', f'v_lshl_add_u32 v{A1}, v{T}, 8, v{A2}',
             's_and_b32 s35, s9, 31', 's_lshr_b32 s36, s9, 5', 's_mul_i32 s36, s36, 80',
             's_mul_i32 s33, s21, 81920', f's_add_u32 s33, s33, {OBUF}',
             's_lshr_b32 s37, s35, 1', 's_add_u32 s37, s37, s36', 's_add_u32 s37, s37, 64', 's_lshl_b32 s37, s37, 8',
             's_and_b32 s38, s35, 1', 's_lshl_b32 s38, s38, 3', 's_add_u32 s37, s37, s38', 's_add_u32 s34, s33, s37',
             's_lshl_b32 s35, s35, 1', 's_add_u32 s35, s35, s36', 's_lshl_b32 s35, s35, 8', 's_add_u32 s33, s33, s35']
        for j in range(NQ):
            St+=[f'v_rcp_f32 v{Lr[j]}, v{Lr[j]}']
        St+=['s_nop 0']
        for j in range(NQ):
            O=s.O[j]; X=s.P[0] if j%2==0 else s.P[1]
            for i in range(12): St+=[f'v_mul_f32 v{O+i}, v{O+i}, v{Lr[j]}']
            St+=[f'v_cvt_pk_bf16_f32 v{X}, v{O}, v{O+1}', f'v_cvt_pk_bf16_f32 v{X+1}, v{O+2}, v{O+3}',
                 f'v_cvt_pk_bf16_f32 v{X+2}, v{O+4}, v{O+5}', f'v_cvt_pk_bf16_f32 v{X+3}, v{O+6}, v{O+7}',
                 f'v_cvt_pk_bf16_f32 v{X+4}, v{O+8}, v{O+9}', f'v_cvt_pk_bf16_f32 v{X+5}, v{O+10}, v{O+11}',
                 f'v_permlane32_swap_b32 v{X}, v{X+2}', f'v_permlane32_swap_b32 v{X+1}, v{X+3}',
                 f'buffer_store_dwordx4 {vr(X,4)}, v{A1}, s[4:7], s33 offen {s.stflag}',
                 's_mov_b64 exec, 0xffffffff',
                 f'buffer_store_dwordx2 {vr(X+4,2)}, v{A2}, s[4:7], s34 offen {s.stflag}',
                 's_mov_b64 exec, -1',
                 's_add_u32 s33, s33, 81920', 's_add_u32 s34, s34, 81920']
        St+=D.finish(1,NW,'s8',on=s.diag)
        St+=['s_endpgm']
        M=['s_waitcnt vmcnt(0)']
        M+=s.addr_init()
        Mx=[s.O[j] for j in range(NQ)]
        for j in range(NQ):
            M+=[f'v_mov_b32 v{Mx[j]}, 0xff800000', f'v_mov_b32 v{s.Q2[j]+1}, 0']
        M+=['s_mov_b32 s12, 0']
        ML=[f'ds_read_b128 {vr(s.K1[0],4)}, v{s.aK1}', f'ds_read_b32 v{s.K2[0]}, v{s.aK2}', 's_waitcnt lgkmcnt(0)']
        for j in range(NQ):
            S=s.S[j%2]
            ML+=s.qk(S,0,j)+['s_nop 11']
            for i in range(8): ML+=[f'v_max3_f32 v{Mx[j]}, v{S+2*i}, v{S+2*i+1}, v{Mx[j]}']
        ML+=[f'v_add_u32 v{s.aK1}, 2560, v{s.aK1}', f'v_add_u32 v{s.aK2}, 2560, v{s.aK2}',
             's_add_u32 s12, s12, 1', 's_cmp_lt_u32 s12, 64']
        M2=[]
        for j in range(NQ):
            M2+=[f'v_mov_b32 v{T+2}, v{Mx[j]}', 's_nop 1', f'v_permlane32_swap_b32 v{Mx[j]}, v{T+2}', 's_nop 1',
                 f'v_max_f32 v{T+1}, v{Mx[j]}, v{T+2}']
            M2+=s.set_m(j,T+1)
        M2+=s.addr_init()+['s_mov_b32 s20, 1']
        def prio_at(k,lvl): return [f's_cmp_lg_u32 s12, {k}', f's_cbranch_scc1 L_{nm}_p{lvl}', f's_setprio {lvl}', f'L_{nm}_p{lvl}:']
        Pr=(prio_at(3,2)+prio_at(5,1)) if s.prio else []
        out=[f'.globl {nm}','.p2align 8',f'.type {nm},@function',f'{nm}:']
        out+=P+R+F+Bar+[f'L_{nm}_join:']
        out+=['s_mov_b32 s12, 0','.p2align 6',f'L_{nm}_loop:']+Pr+B+['s_add_u32 s12, s12, 1',f's_cmp_lt_u32 s12, {NI-2}',f's_cbranch_scc1 L_{nm}_loop']
        out+=(['s_setprio 0'] if s.prio else [])+Lz+E+C+[f'L_{nm}_store:']+St
        out+=[f'L_{nm}_truemax:']+M+[f'L_{nm}_mloop:']+ML+[f's_cbranch_scc1 L_{nm}_mloop']+M2+R+F2+[f's_branch L_{nm}_join']
        out+=[f'L_{nm}_end:','s_endpgm']
        tr1=P+R+F+Bar+B+B+Lz+E+C+St
        tr2=P+R+F+Bar+B+Lz+E+C+M+ML+ML+M2+R+F2+B+Lz+E+C+St
        probs=check(tr1,nm+'/main')+check(tr2,nm+'/fallback')
        probs=[p for p in probs if not ('pending vm' in p and vr(s.DUM,4) in p)]
        kd=f""".amdhsa_kernel {nm}
  .amdhsa_next_free_vgpr {s.nv}
  .amdhsa_next_free_sgpr 102
  .amdhsa_accum_offset {(s.nv+3)//4*4}
  .amdhsa_group_segment_fixed_size 0
  .amdhsa_kernarg_size 96
  .amdhsa_user_sgpr_count 2
  .amdhsa_user_sgpr_kernarg_segment_ptr 1
  .amdhsa_system_sgpr_workgroup_id_x 1
.end_amdhsa_kernel"""
        launch=f'; @launch kernel={nm} grid=(256,1,1) block=({NW*64},1,1) lds=163840'
        return out,kd,launch,probs
if __name__=='__main__':
    k=K2()
    out,kd,launch,probs=k.gen()
    print(k.nv,len(out))
    for p in probs[:40]: print(p)
```

```python
from asmlib import *
from layout import *
import diag as D
CH=20480; NSLOT=6; NCH=10; RS=336; OD=8
class K3:
    def __init__(s,name='outproj_kernel',diag=False,rot=True,dist=3):
        s.name=name; s.diag=diag; s.rot=rot; s.dist=dist
        s.T=2
        s.wa=[12,13]
        s.l16=14
        s.acc=[[16+20*tt+4*ft for ft in range(5)] for tt in range(2)]
        s.W=[[56+20*b+4*ft for ft in range(5)] for b in range(3)]
        s.O=[[116+8*k+4*tt for tt in range(2)] for k in range(OD)]
        s.G=[180,181,182,183]
        s.nv=184
    def reads(s,n):
        b=n%3; kk=n%2; L=[]
        for ft in range(5):
            for k2 in range(2):
                L.append(f'ds_read_b64_tr_b16 {vr(s.W[b][ft]+2*k2,2)}, v{s.wa[k2]} offset:{ft*32+kk*5120}')
        return L
    def mf(s,n):
        b=n%3
        return [f'v_mfma_f32_16x16x32_bf16 {vr(s.acc[tt][ft],4)}, {vr(s.W[b][ft],4)}, {vr(s.O[n%OD][tt],4)}, {vr(s.acc[tt][ft],4)}' for ft in range(5) for tt in range(2)]
    def adv(s,c):
        d=CH if c%NSLOT else -(NSLOT-1)*CH
        return [f'v_add_u32 v{r}, {d}, v{r}' if d>0 else f'v_subrev_u32 v{r}, {-d}, v{r}' for r in s.wa]
    def oload(s,n):
        c=n//2; kk=n%2; L=[]
        if kk==0:
            if c<8: L+=['s_lshl_b32 s27, s26, 11','s_add_u32 s28, s20, s27','s_add_u32 s29, s21, s27',
                        's_add_u32 s26, s26, 1','s_and_b32 s26, s26, 7']
            else:   L+=[f's_add_u32 s28, s20, {c*2048}',f's_add_u32 s29, s21, {c*2048}']
        for tt in range(2):
            L.append(f'buffer_load_dwordx4 {vr(s.O[n%OD][tt],4)}, v{s.l16}, s[4:7], s{28+tt} offen offset:{kk*1024}')
        return L
    def item_addr(s,rnd,R):
        T=s.T
        return [f'v_add_u32 v{T}, {512*rnd}, v0' if rnd else f'v_mov_b32 v{T}, v0',
                f'v_mul_u32_u24 v{T+1}, 6554, v{T}', f'v_lshrrev_b32 v{T+1}, 16, v{T+1}',
                f'v_mul_u32_u24 v{T+2}, 10, v{T+1}', f'v_sub_u32 v{T+2}, v{T}, v{T+2}',
                f'v_mul_u32_u24 v{R}, {RS}, v{T+1}', f'v_lshl_add_u32 v{R}, v{T+2}, 5, v{R}',
                f'v_mul_u32_u24 v{R+1}, 1280, v{T+1}', f'v_lshl_add_u32 v{R+1}, v{T+2}, 4, v{R+1}',
                f'v_lshlrev_b32 v{T+1}, 2, v{T+1}',
                f'buffer_load_dword v{s.G[2*rnd]}, v{T+1}, s[4:7], s40 offen', f'buffer_load_dword v{s.G[2*rnd+1]}, v{T+1}, s[4:7], s41 offen']
    def final(s):
        T=s.T; L=[]
        A=16; B=24
        for rnd in range(2):
            R=T+4+2*rnd; G=s.G[2*rnd]
            if rnd:
                L+=['s_cmp_ge_u32 s3, 2', f's_cbranch_scc1 L_{s.name}_fin2']
            L+=[f'ds_read_b128 {vr(A,4)}, v{R}', f'ds_read_b128 {vr(A+4,4)}, v{R} offset:16',
                f'ds_read_b128 {vr(B,4)}, v{R} offset:{64*RS}', f'ds_read_b128 {vr(B+4,4)}, v{R} offset:{64*RS+16}',
                's_waitcnt lgkmcnt(2)']
            def rne_pairs(Rg):
                X=[]
                for i in range(4): X+=[f'v_cvt_pk_bf16_f32 v{Rg+2*i+1}, v{Rg+2*i}, v{Rg+2*i+1}']
                for i in range(4): X+=[f'v_lshlrev_b32 v{Rg+2*i}, 16, v{Rg+2*i+1}', f'v_and_b32 v{Rg+2*i+1}, 0xffff0000, v{Rg+2*i+1}']
                return X
            L+=rne_pairs(A)+['s_waitcnt lgkmcnt(0)']+rne_pairs(B)
            for i in range(8): L+=[f'v_mul_f32 v{A+i}, v{G}, v{A+i}', f'v_mul_f32 v{B+i}, v{G+1}, v{B+i}']
            L+=rne_pairs(A)+rne_pairs(B)
            for i in range(8): L+=[f'v_add_f32 v{A+i}, v{A+i}, v{B+i}']
            for i in range(4): L+=[f'v_cvt_pk_bf16_f32 v{36+4*rnd+i}, v{A+2*i}, v{A+2*i+1}']
            L+=[f'buffer_store_dwordx4 {vr(36+4*rnd,4)}, v{R+1}, s[12:15], s42 offen']
        return L
    def gen(s):
        nm=s.name; T=s.T; DI=s.dist
        P=[f's_cmp_ge_u32 s2, 256', f's_cbranch_scc1 L_{nm}_end',
           's_load_dwordx2 s[48:49], s[0:1], 32',
           's_load_dwordx2 s[50:51], s[0:1], 56',
           's_load_dwordx2 s[52:53], s[0:1], 72',
           's_load_dwordx2 s[4:5], s[0:1], 88']+D.start(s.diag)+[
           'v_lshrrev_b32 v1, 6, v0',
           's_and_b32 s16, s2, 7','s_lshr_b32 s17, s2, 3',
           'v_readfirstlane_b32 s3, v1',
           's_lshl_b32 s18, s16, 2','s_and_b32 s19, s17, 3','s_add_u32 s9, s18, s19',
           's_lshr_b32 s10, s17, 2',
           's_lshl_b32 s19, s19, 1','s_add_u32 s26, s19, s10','s_and_b32 s26, s26, 7']+([] if s.rot else ['s_mov_b32 s26, 0'])+[
           's_and_b32 s8, s3, 1','s_bfe_u32 s11, s3, 0x10001',
           f'v_and_b32 v{T}, 63, v0',
           's_lshl_b32 s40, s9, 8', f's_add_u32 s40, s40, {GATE}', 's_add_u32 s41, s40, 8192',
           's_mul_i32 s42, s9, 81920','s_mul_i32 s43, s10, 160','s_add_u32 s42, s42, s43',
           f's_mov_b32 s6, {WS_BYTES}', 's_mov_b32 s7, 0x20000','s_mov_b32 s14, 2621440','s_mov_b32 s15, 0x20000',
           's_mov_b32 s18, 819200','s_mov_b32 s19, 0x20000',
           's_cmp_lt_u32 s3, 4', f's_cbranch_scc1 L_{nm}_compute']
        W0=['s_waitcnt lgkmcnt(0)','s_and_b32 s5, s5, 0xffff','s_mov_b32 s12, s52','s_and_b32 s13, s53, 0xffff']+D.stamp_w(1,s.diag)
        Ld=[]
        vm=[16+i for i in range(5)]; vt=[21+i for i in range(5)]
        for i in range(5):
            Ld+=[f'v_add_u32 v{T+1}, {64*i}, v{T}',
                 f'v_mul_u32_u24 v{T+2}, 6554, v{T+1}', f'v_lshrrev_b32 v{T+2}, 16, v{T+2}',
                 f'v_mul_u32_u24 v{T+3}, 10, v{T+2}', f'v_sub_u32 v{T+1}, v{T+1}, v{T+3}',
                 f'v_lshrrev_b32 v{T+3}, 2, v{T+2}', f'v_bfe_u32 v{T+4}, v{T+3}, 1, 1', f'v_xor_b32 v{T+3}, v{T+3}, v{T+4}',
                 f'v_and_b32 v{T+2}, 3, v{T+2}',
                 f'v_lshrrev_b32 v{T+4}, 2, v{T+3}', f'v_add_u32 v{T+4}, v{T+4}, v{T+3}',
                 f'v_lshl_add_u32 v{T+4}, v{T+4}, 2, v{T+2}',
                 f'v_mul_u32_u24 v{T+4}, 1280, v{T+4}', f'v_lshl_add_u32 v{vm[i]}, v{T+1}, 4, v{T+4}',
                 f'v_mul_u32_u24 v{T+4}, 20, v{T+3}', f'v_add3_u32 v{T+4}, v{T+4}, v{T+2}, 16',
                 f'v_mul_u32_u24 v{T+4}, 1280, v{T+4}', f'v_lshl_add_u32 v{vt[i]}, v{T+1}, 4, v{T+4}']
        Ld+=['s_mul_i32 s22, s11, 10240','s_mul_i32 s23, s8, 5120','s_add_u32 s22, s22, s23',
             's_mul_i32 s24, s8, 51200','s_add_u32 s24, s24, s43',
             's_mul_i32 s25, s8, 204800','s_add_u32 s25, s25, s43']
        Ld+=W0+['s_cmp_eq_u32 s11, 0','s_cselect_b32 s16, s48, s50','s_cselect_b32 s17, s49, s51','s_and_b32 s17, s17, 0xffff']
        def chunk(c):
            so=(c%NSLOT)*CH; X=[]
            if c<8: X+=['s_mul_i32 s27, s26, 102400','s_add_u32 s27, s27, s24','s_add_u32 s26, s26, 1','s_and_b32 s26, s26, 7']
            else:   X+=[f's_add_u32 s27, s25, {(c-8)*409600}']
            for i in range(5):
                X+=[f's_add_u32 m0, s22, {so+1024*i}','s_nop 0',f'buffer_load_dwordx4 v{(vm if c<8 else vt)[i]}, s[16:19], s27 offen lds']
            return X
        Ld+=D.stamp_w(2,s.diag)
        for c in range(DI): Ld+=chunk(c)
        Ld+=D.stamp_w(3,s.diag)
        for c in range(NCH):
            rem=min(NCH-1,c+DI-1)-c
            Ld+=[f's_waitcnt vmcnt({rem*5})','s_barrier']
            if c+DI<NCH: Ld+=chunk(c+DI)
        Ld+=s.item_addr(0,T+4)+s.item_addr(1,T+6)+['s_barrier','s_waitcnt vmcnt(0)','s_barrier']
        C=[f'v_lshlrev_b32 v{s.l16}, 4, v{T}',
           's_lshl_b32 s20, s9, 2','s_lshl_b32 s21, s8, 1','s_add_u32 s20, s20, s21','s_mul_i32 s20, s20, 40960',
           's_mul_i32 s21, s11, 20480','s_add_u32 s20, s20, s21',f's_add_u32 s20, s20, {OBUF}','s_add_u32 s21, s20, 40960']+W0
        OP=6
        for n in range(OP): C+=s.oload(n)
        for tt in range(2):
            for ft in range(5):
                for i in range(4): C.append(f'v_mov_b32 v{s.acc[tt][ft]+i}, 0')
        C+=[f'v_lshrrev_b32 v{T+2}, 4, v{T}', f'v_and_b32 v{T+3}, 1, v{T+2}',
            f'v_bfe_u32 v{T+4}, v{T}, 2, 2', f'v_lshl_add_u32 v{T+4}, v{T+2}, 3, v{T+4}',
            f'v_and_b32 v{T+5}, 3, v{T}', f'v_lshlrev_b32 v{T+5}, 3, v{T+5}',
            's_mul_i32 s22, s11, 10240', f'v_add_u32 v{T+5}, s22, v{T+5}']
        for k2 in range(2):
            C+=[f'v_xor_b32 v{T+6}, {k2}, v{T+3}', f'v_lshl_add_u32 v{T+6}, v{T+6}, 2, v{T+4}',
                f'v_mul_u32_u24 v{T+6}, 160, v{T+6}', f'v_add_u32 v{s.wa[k2]}, v{T+6}, v{T+5}']
        C+=[f'v_and_b32 v{T+1}, 15, v{T}',
            's_lshl_b32 s22, s11, 6','s_lshl_b32 s23, s8, 5','s_add_u32 s22, s22, s23',
            f'v_add_u32 v{T+1}, s22, v{T+1}', f'v_mul_u32_u24 v{T+1}, {RS}, v{T+1}', f'v_lshl_add_u32 v15, v{T+2}, 4, v{T+1}']
        NK=2*NCH
        M=D.stamp_w(2,s.diag)+['s_barrier']+D.stamp_w(3,s.diag)+s.reads(0)+s.reads(1)
        for n in range(NK):
            c=n//2; kk=n%2
            F=s.mf(n)
            oafter=2*(min(NK-1,n+OP-1)-n)
            M+=[f's_waitcnt vmcnt({oafter}) lgkmcnt({10 if n+1<NK else 0})']
            R=s.reads(n+2) if n+2<NK else []
            Ol=s.oload(n+OP) if n+OP<NK else []
            M+=F[:2]
            if kk==0 and c<NCH-1: M+=['s_barrier']+s.adv(c+1)
            k=0
            for i in range(2,10):
                M+=R[k:k+2] if i<4 else R[k:k+1]; k+=2 if i<4 else 1
                M+=[F[i]]
            M+=R[k:]+Ol
        E=D.stamp_w(9,s.diag)+s.item_addr(0,T+4)+s.item_addr(1,T+6)+['s_barrier']
        for tt in range(2):
            for ft in range(5):
                E.append(f'ds_write_b128 v15, {vr(s.acc[tt][ft],4)} offset:{tt*16*RS+ft*64}')
        E+=['s_waitcnt vmcnt(0) lgkmcnt(0)','s_barrier']+D.stamp_w(10,s.diag)
        Fn=s.final()
        out=[f'.globl {nm}','.p2align 8',f'.type {nm},@function',f'{nm}:']
        out+=P+Ld+[f's_branch L_{nm}_final',f'L_{nm}_compute:']+C+M+E+[f'L_{nm}_final:']+Fn+[f'L_{nm}_fin2:']+D.finish(2,8,'s3',on=s.diag)+[f'L_{nm}_end:','s_endpgm']
        probs=check(P+C+M+E+Fn,nm+'/c')+check(P+Ld+Fn,nm+'/l')
        probs=[p for p in probs if 'lgkmcnt overflow' not in p]
        kd=f""".amdhsa_kernel {nm}
  .amdhsa_next_free_vgpr {s.nv}
  .amdhsa_next_free_sgpr 102
  .amdhsa_accum_offset {(s.nv+3)//4*4}
  .amdhsa_group_segment_fixed_size 0
  .amdhsa_kernarg_size 96
  .amdhsa_user_sgpr_count 2
  .amdhsa_user_sgpr_kernarg_segment_ptr 1
  .amdhsa_system_sgpr_workgroup_id_x 1
.end_amdhsa_kernel"""
        launch=f'; @launch kernel={nm} grid=(256,1,1) block=(512,1,1) lds={NSLOT*CH}'
        return out,kd,launch,probs
```

```python
import sys, importlib
sys.path.insert(0,'gen')
from layout import *
HEADER=open('gated_mix__grouped_kv_mqa__mha_block__prompt.s.ref').read().split('; Override launch')[0]
def build(kernels, path):
    launches=[];code=[];kds=[];probs=[]
    for k in kernels:
        out,kd,launch,pr=k.gen()
        launches.append(launch); code+=out; kds.append(kd); probs+=pr
    txt=HEADER+"\n".join(launches)+"\n"
    txt+='.amdgcn_target "amdgcn-amd-amdhsa--gfx950"\n.text\n'
    for l in code:
        if l.endswith(':') or l.startswith('.'): txt+=l+"\n"
        else: txt+="    "+l.rstrip()+"\n"
    txt+='.section .rodata,"a"\n'
    for kd in kds: txt+=".p2align 6\n"+kd+"\n"
    open(path,'w').write(txt)
    for p in probs[:50]: print(p)
    print(f"wrote {path}: {len(txt)} bytes, {len(probs)} problems")
if __name__=='__main__':
    from k1 import K1
    from k2 import K2
    from k3 import K3
    path=sys.argv[1]
    if path=='final': path='gated_mix__grouped_kv_mqa__mha_block__prompt.s'
    kw={'k1':{},'k2':{},'k3':{}}
    only=None
    for a in sys.argv[2:]:
        k,v=a.split('=',1)
        try: v=eval(v)
        except Exception: pass
        if k=='only': only=v; continue
        if '.' in k:
            kk,o=k.split('.'); kw[kk][o]=v
        else:
            for kk in kw: kw[kk][k]=v
    ks=[K1(**kw['k1']),K2(**kw['k2']),K3(**kw['k3'])]
    if only is not None: ks=[ks[i] for i in only]
    build(ks,path)
```

```python
from asmlib import *
from layout import *
import diag as D
import struct
def f2u(f): return struct.unpack('<I',struct.pack('<f',f))[0]
SLOT=39936; XOFF=0; WOFF=16384; EOFF=36864; NSLOT=4; GOFF=NSLOT*SLOT
NCH=10
class K1:
    def __init__(s,name='proj_kernel',diag=False,rot=True,stflag='',ldflag='',wldflag=''):
        s.ldflag=ldflag; s.wldflag=wldflag
        s.name=name; s.diag=diag; s.rot=rot; s.stflag=stflag
        s.acc=[16+16*t for t in range(5)]
        s.accE=96
        s.W=[[112+28*b+4*t for t in range(5)] for b in range(3)]
        s.X=[112+28*b+20 for b in range(3)]
        s.G=[112+28*b+24 for b in range(3)]
        s.E=196; s.XE=200
        s.xa=[204+i for i in range(4)]
        s.wa=[208+i for i in range(5)]
        s.ea=213; s.xea=214; s.ga=215; s.gacc=216
        s.T=2
        s.nv=220
    def reads(s,n,var):
        b=n%3; st=n%4; c=n//4
        L=[f'ds_read_b128 {vr(s.X[b],4)}, v{s.xa[st]}']
        for t in range(5):
            for kk in range(2):
                L.append(f'ds_read_b64_tr_b16 {vr(s.W[b][t]+2*kk,2)}, v{s.wa[t]} offset:{(16*st+4*kk)*320}')
        if var=='V': L.append(f'ds_read_b128 {vr(s.G[b],4)}, v{s.ga} offset:{(64*c+16*st)*2}')
        if var in('QK','QV') and st==1:
            L+=[f'ds_read_b64_tr_b16 {vr(s.E,2)}, v{s.ea}', f'ds_read_b64_tr_b16 {vr(s.E+2,2)}, v{s.ea} offset:160',
                f'ds_read_b128 {vr(s.XE,4)}, v{s.xea}']
        return L
    def mfmas(s,n,var):
        b=n%3; L=[]
        for t in range(5):
            a,bb=(vr(s.W[b][t],4),vr(s.X[b],4)) if var!='V' else (vr(s.X[b],4),vr(s.W[b][t],4))
            L.append(f'v_mfma_f32_32x32x16_bf16 {vr(s.acc[t],16)}, {a}, {bb}, {vr(s.acc[t],16)}')
        if var in('QK','QV') and n%4==1:
            a,bb=(vr(s.E,4),vr(s.XE,4)) if var=='QK' else (vr(s.XE,4),vr(s.E,4))
            L.append(f'v_mfma_f32_32x32x16_bf16 {vr(s.accE,16)}, {a}, {bb}, {vr(s.accE,16)}')
        return L
    def advance(s,c,var):
        d=SLOT if c%NSLOT else -(NSLOT-1)*SLOT
        regs=s.xa+s.wa+([s.ea,s.xea] if var in('QK','QV') else [])
        if d>0: return [f'v_add_u32 v{r}, {d}, v{r}' for r in regs]
        return [f'v_subrev_u32 v{r}, {-d}, v{r}' for r in regs]
    def mainloop(s,var):
        L=[]
        gate=var=='V'
        NK=4*NCH
        L+=D.stamp_w(2,s.diag)+['s_barrier']+D.stamp_w(3,s.diag)
        L+=s.reads(0,var)+s.reads(1,var)
        for n in range(NK):
            c=n//4; st=n%4; b=n%3
            M=s.mfmas(n,var)
            nxt=len(s.reads(n+1,var)) if n+1<NK else 0
            L+=[f's_waitcnt lgkmcnt({nxt})']
            dots=[f'v_dot2_f32_bf16 v{s.gacc}, v{s.X[b]+i}, v{s.G[b]+i}, v{s.gacc}' for i in range(4)] if gate else []
            R=s.reads(n+2,var) if n+2<NK else []
            pre=[]
            if st==2 and c<NCH-1:
                pre=['s_barrier']+(D.stamp(4+c//2,False))+s.advance(c+1,var)
            L+=[M[0]]+pre
            per=(len(R)+len(M)-2)//(len(M)-1)
            k=0
            for i,m in enumerate(M[1:]):
                L+=R[k:k+per]; k+=per
                if i<len(dots): L.append(dots[i])
                L.append(m)
            L+=R[k:]
        L+=D.stamp_w(9,s.diag)
        return L
    def epi_qk(s,isK):
        T=s.T; L=[]
        HS=163840 if isK else 81920
        g=lambda o: s.acc[o//4]+4*(o%4)
        L+=[f'v_and_b32 v{T}, 63, v0', f'v_lshlrev_b32 v{T}, 4, v{T}',
            f'v_bfe_u32 v{T+1}, v0, 5, 1', f'v_mul_u32_u24 v{T+1}, {HS}, v{T+1}',
            f'v_and_b32 v{T+2}, 31, v0', f'v_lshl_add_u32 v{T+1}, v{T+2}, 3, v{T+1}', f'v_add_u32 v{T+1}, 1024, v{T+1}',
            's_nop 4']
        Pk=128
        for m in range(4):
            B=Pk+12*m
            if not isK:
                for o in range(5*m,5*m+5):
                    for i in range(0,4,2): L.append(f'v_pk_mul_f32 {vr(g(o)+i,2)}, {vr(g(o)+i,2)}, s[44:45]')
            for pr in range(2):
                oA,oB=5*m+2*pr,5*m+2*pr+1; X=B+4*pr
                L+=[f'v_cvt_pk_bf16_f32 v{X}, v{g(oA)}, v{g(oA)+1}', f'v_cvt_pk_bf16_f32 v{X+1}, v{g(oA)+2}, v{g(oA)+3}',
                    f'v_cvt_pk_bf16_f32 v{X+2}, v{g(oB)}, v{g(oB)+1}', f'v_cvt_pk_bf16_f32 v{X+3}, v{g(oB)+2}, v{g(oB)+3}']
            oE=5*m+4
            L+=[f'v_cvt_pk_bf16_f32 v{B+8}, v{g(oE)}, v{g(oE)+1}', f'v_cvt_pk_bf16_f32 v{B+9}, v{g(oE)+2}, v{g(oE)+3}']
            for pr in range(2):
                X=B+4*pr
                L+=[f'v_permlane32_swap_b32 v{X}, v{X+2}', f'v_permlane32_swap_b32 v{X+1}, v{X+3}']
            L+=[f'buffer_store_dwordx2 {vr(B+8,2)}, v{T+1}, s[4:7], s41 offen {s.stflag}',
                f'buffer_store_dwordx4 {vr(B,4)}, v{T}, s[4:7], s41 offen {s.stflag}',
                f's_add_u32 s41, s41, {HS}',
                f'buffer_store_dwordx4 {vr(B+4,4)}, v{T}, s[4:7], s41 offen {s.stflag}',
                f's_add_u32 s41, s41, {HS}']
        if isK:
            N=112
            for m in range(4):
                sA,sB,sE=N+3*m,N+3*m+1,N+3*m+2
                for (d,os_) in((sA,(5*m,5*m+1)),(sB,(5*m+2,5*m+3)),(sE,(5*m+4,))):
                    first=True
                    for o in os_:
                        for i in range(4):
                            r=g(o)+i
                            L.append(f'v_mul_f32 v{d}, v{r}, v{r}' if first else f'v_fmac_f32 v{d}, v{r}, v{r}'); first=False
            L+=['s_nop 1']
            for m in range(4): L.append(f'v_permlane32_swap_b32 v{N+3*m}, v{N+3*m+1}')
            L+=['s_nop 1']
            for m in range(4): L.append(f'v_add_f32 v{N+3*m}, v{N+3*m}, v{N+3*m+1}')
            for m in range(4): L.append(f'v_add_f32 v{N+3*m}, v{N+3*m}, v{N+3*m+2}')
            for dpp in('quad_perm:[1,0,3,2]','quad_perm:[2,3,0,1]','row_half_mirror','row_mirror'):
                for m in range(4): L.append(f'v_max_f32_dpp v{N+3*m}, v{N+3*m}, v{N+3*m} {dpp} row_mask:0xf bank_mask:0xf')
            for m in range(4): L.append(f'v_mov_b32 v{N+3*m+1}, v{N+3*m}')
            L+=['s_nop 0']
            for m in range(4): L.append(f'v_permlane16_swap_b32 v{N+3*m}, v{N+3*m+1}')
            L+=['s_nop 1']
            for m in range(4): L.append(f'v_max_f32 v{N+3*m}, v{N+3*m}, v{N+3*m+1}')
            L+=[f'v_bfe_u32 v{T+3}, v0, 5, 1', f'v_lshlrev_b32 v{T+3}, 8, v{T+3}',
                's_mov_b32 s42, 1','s_mov_b32 s43, 1','s_mov_b64 exec, s[42:43]']
            for m in range(4): L.append(f'buffer_store_dword v{N+3*m}, v{T+3}, s[4:7], s40 offen offset:{512*m} {s.stflag}')
            L+=['s_mov_b64 exec, -1']
        return L
    def v_addr(s):
        T=s.T
        L=[f'v_and_b32 v{T}, 31, v0', f'v_bfe_u32 v{T+1}, v0, 5, 1', f'v_mul_u32_u24 v{T+1}, 320, v{T+1}', 's_mov_b32 s42, 163840']
        for t in range(5):
            A=T+4+t
            L+=[f'v_add_u32 v{T+2}, {32*t}, v{T}', f'v_mul_u32_u24 v{T+3}, 3277, v{T+2}', f'v_lshrrev_b32 v{T+3}, 16, v{T+3}',
                f'v_mul_u32_u24 v{A}, 20, v{T+3}', f'v_sub_u32 v{T+2}, v{T+2}, v{A}',
                f'v_mul_lo_u32 v{A}, v{T+3}, s42', f'v_lshl_add_u32 v{A}, v{T+2}, 4, v{A}', f'v_add_u32 v{A}, v{A}, v{T+1}']
        return L
    def epi_v(s):
        T=s.T; L=['s_nop 6']
        Pk=112
        for t in range(5):
            A=T+4+t
            for i in range(8):
                L.append(f'v_cvt_pk_bf16_f32 v{Pk+8*t+i}, v{s.acc[t]+2*i}, v{s.acc[t]+2*i+1}')
            L+=[f'buffer_store_dwordx4 {vr(Pk+8*t,4)}, v{A}, s[4:7], s41 offen offset:1280 {s.stflag}',
                f'buffer_store_dwordx4 {vr(Pk+8*t+4,4)}, v{A}, s[4:7], s41 offen offset:1920 {s.stflag}']
        return L
    def epi_gate(s):
        T=s.T; G=s.gacc; nm=s.name
        L=['s_cmp_lg_u32 s10, 12', f's_cbranch_scc1 L_{nm}_end2']
        def rne(r): return [f'v_cvt_pk_bf16_f32 v{r}, v{r}, v{r}', f'v_and_b32 v{r}, 0xffff0000, v{r}']
        L+=[f'v_mov_b32 v{T}, v{G}','s_nop 1',f'v_permlane32_swap_b32 v{G}, v{T}','s_nop 1',f'v_add_f32 v{G}, v{G}, v{T}']
        L+=rne(G)
        L+=[f'v_mul_f32 v{G}, {f2u(-LOG2E):#x}, v{G}', f'v_exp_f32 v{G}, v{G}', 's_nop 0', f'v_add_f32 v{G}, 1.0, v{G}', f'v_rcp_f32 v{G}, v{G}','s_nop 0']
        L+=rne(G)
        L+=[f'v_sub_f32 v{T}, 1.0, v{G}']+rne(T)
        L+=['s_mov_b32 s42, 0','s_mov_b32 s43, -1',
            f'v_cndmask_b32 v{G}, v{G}, v{T}, s[42:43]',
            f'v_and_b32 v{T}, 31, v0', f'v_lshlrev_b32 v{T}, 2, v{T}', f'v_bfe_u32 v{T+1}, v0, 5, 1', f'v_lshl_add_u32 v{T}, v{T+1}, 13, v{T}',
            f's_lshl_b32 s42, s46, 7', f's_add_u32 s42, s42, {GATE}',
            f'buffer_store_dword v{G}, v{T}, s[4:7], s42 offen {s.stflag}']
        return L
    XS=2*SLOT
    def extra_write(s):
        T=s.T
        L=[f'v_lshrrev_b32 v{T}, 6, v0', f'v_and_b32 v{T+1}, 63, v0', f'v_lshlrev_b32 v{T+1}, 4, v{T+1}', f'v_lshl_add_u32 v{T}, v{T}, 12, v{T+1}',
           f'v_add_u32 v{T}, {s.XS}, v{T}']
        for r4 in range(4): L.append(f'ds_write_b128 v{T}, {vr(s.accE+4*r4,4)} offset:{1024*r4}')
        L+=['s_waitcnt lgkmcnt(0)','s_barrier']
        return L
    def extra_epi(s,var):
        T=s.T; L=[]
        A=16
        L+=[f'v_and_b32 v{T+1}, 63, v0', f'v_lshlrev_b32 v{T}, 4, v{T+1}', f'v_add_u32 v{T+2}, {s.XS}, v{T}']
        for w in range(4):
            for r4 in range(4): L.append(f'ds_read_b128 {vr(A+16*w+4*r4,4)}, v{T+2} offset:{4096*w+1024*r4}')
            if w==2: L.append('s_waitcnt lgkmcnt(4)')
        L+=['s_waitcnt lgkmcnt(0)']
        for i in range(16):
            L+=[f'v_add_f32 v{A+i}, v{A+i}, v{A+16+i}', f'v_add_f32 v{A+32+i}, v{A+32+i}, v{A+48+i}']
        for i in range(16): L.append(f'v_add_f32 v{A+i}, v{A+i}, v{A+32+i}')
        X=96
        if var=='QK':
            N=112
            for i in range(6): L.append(f'v_cvt_pk_bf16_f32 v{X+i}, v{A+2*i}, v{A+2*i+1}')
            L+=['s_nop 1',f'v_permlane32_swap_b32 v{X}, v{X+2}', f'v_permlane32_swap_b32 v{X+1}, v{X+3}',
                f'buffer_store_dwordx4 {vr(X,4)}, v{T}, s[4:7], s46 offen {s.stflag}',
                f'v_lshrrev_b32 v{T+1}, 1, v{T}',
                's_mov_b64 exec, 0xffffffff',
                f'buffer_store_dwordx2 {vr(X+4,2)}, v{T+1}, s[4:7], s46 offen offset:1024 {s.stflag}',
                's_mov_b64 exec, -1']
            for i in range(8): L.append(f'v_mul_f32 v{N}, v{A}, v{A}' if i==0 else f'v_fmac_f32 v{N}, v{A+i}, v{A+i}')
            for i in range(4): L.append(f'v_mul_f32 v{N+2}, v{A+8}, v{A+8}' if i==0 else f'v_fmac_f32 v{N+2}, v{A+8+i}, v{A+8+i}')
            L+=[f'v_mov_b32 v{N+1}, v{N}','s_nop 1',f'v_permlane32_swap_b32 v{N}, v{N+1}','s_nop 1',
                f'v_add_f32 v{N}, v{N}, v{N+1}', f'v_add_f32 v{N}, v{N}, v{N+2}','s_nop 1']
            for dpp in('quad_perm:[1,0,3,2]','quad_perm:[2,3,0,1]','row_half_mirror','row_mirror'):
                L+=[f'v_max_f32_dpp v{N}, v{N}, v{N} {dpp} row_mask:0xf bank_mask:0xf','s_nop 1']
            L+=[f'v_mov_b32 v{N+1}, v{N}','s_nop 1',f'v_permlane16_swap_b32 v{N}, v{N+1}','s_nop 1',f'v_max_f32 v{N}, v{N}, v{N+1}',
                f'v_mov_b32 v{N+3}, 0',
                's_mov_b64 exec, 1',
                f'buffer_store_dword v{N}, v{N+3}, s[4:7], s47 offen {s.stflag}']
        else:
            for i in range(8): L.append(f'v_cvt_pk_bf16_f32 v{X+i}, v{A+2*i}, v{A+2*i+1}')
            L+=[f'v_and_b32 v{T}, 31, v0', f'v_bfe_u32 v{T+1}, v0, 5, 1', f'v_mul_u32_u24 v{T+1}, 320, v{T+1}', f'v_lshl_add_u32 v{T}, v{T}, 4, v{T+1}',
                's_mov_b32 s42, 0x000fffff','s_mov_b32 s43, 0x000fffff','s_mov_b64 exec, s[42:43]',
                f'buffer_store_dwordx4 {vr(X,4)}, v{T}, s[4:7], s46 offen offset:1280 {s.stflag}',
                f'buffer_store_dwordx4 {vr(X+4,4)}, v{T}, s[4:7], s46 offen offset:1920 {s.stflag}']
        return L
    def loader(s):
        T=s.T; L=[]; nm=s.name
        vx=[16,17]; vw=[18+i for i in range(5)]; ve=23
        L+=[f'v_and_b32 v{T}, 63, v0', f'v_lshrrev_b32 v{T+1}, 3, v{T}', f'v_mul_u32_u24 v{T+1}, 1280, v{T+1}',
            f'v_and_b32 v{T+2}, 7, v{T}', f'v_lshrrev_b32 v{T+3}, 4, v{T}', f'v_xor_b32 v{T+2}, v{T+2}, v{T+3}',
            f'v_lshl_add_u32 v{vx[0]}, v{T+2}, 4, v{T+1}', f'v_xor_b32 v{T+2}, 4, v{T+2}', f'v_lshl_add_u32 v{vx[1]}, v{T+2}, 4, v{T+1}',
            's_mul_i32 s26, s46, 40960',
            's_lshl_b32 s31, s8, 12']
        def xpart(c):
            so=(c%NSLOT)*SLOT; C=['s_lshl_b32 s36, s11, 7','s_add_u32 s36, s36, s26']
            for i in range(4):
                C+=[f's_add_u32 m0, s31, {so+1024*i}', f's_add_u32 s37, s36, {i*8*1280}',
                    f'buffer_load_dwordx4 v{vx[i%2]}, s[12:15], s37 offen lds {s.ldflag}']
            return C
        def wpart(c):
            so=(c%NSLOT)*SLOT; C=['s_mul_i32 s36, s11, s29','s_add_u32 s36, s36, s27']
            for i in range(5):
                C+=[f's_add_u32 m0, s32, {so+1024*i}', 's_nop 0',
                    f'buffer_load_dwordx4 v{vw[i]}, s[16:19], s36 offen lds {s.wldflag}']
            C+=['s_mul_i32 s36, s11, s30','s_add_u32 s36, s36, s28',
                f's_mul_i32 s37, s39, {so}', 's_add_u32 m0, s33, s37', 's_mov_b64 exec, s[34:35]',
                f'buffer_load_dwordx4 v{ve}, s[20:23], s36 offen lds', 's_mov_b64 exec, -1',
                's_add_u32 s11, s11, 1','s_cmp_eq_u32 s11, 10','s_cselect_b32 s11, 0, s11']
            return C
        L+=D.stamp_w(2,s.diag)+xpart(0)
        L+=['s_mul_i32 s25, s8, 320']
        for i in range(5):
            L+=[f'v_add_u32 v{T+1}, s25, v{T}']+([f'v_add_u32 v{T+1}, {64*i}, v{T+1}'] if i else [])+[
                f'v_mul_u32_u24 v{T+2}, 3277, v{T+1}', f'v_lshrrev_b32 v{T+2}, 16, v{T+2}',
                f'v_mul_u32_u24 v{T+3}, 20, v{T+2}', f'v_sub_u32 v{T+1}, v{T+1}, v{T+3}',
                f'v_mul_lo_u32 v{vw[i]}, v{T+2}, s24', f'v_lshl_add_u32 v{vw[i]}, v{T+1}, 4, v{vw[i]}']
        L+=[f'v_lshlrev_b32 v{ve}, 4, v{T}',
            's_lshl_b32 s29, s24, 6',
            's_mul_i32 s32, s8, 5120', f's_add_u32 s32, s32, {WOFF}',
            's_mov_b32 s34, -1','s_mov_b32 s35, 0xff',
            's_mul_i32 s28, s8, 640',
            f's_add_u32 s33, s28, {EOFF}', f's_add_u32 s37, s28, {GOFF}', 's_and_b32 s36, s8, 1', 's_mul_i32 s36, s36, 640',
            's_cmp_lt_u32 s10, 8',
            's_cselect_b32 s30, 2560, 0','s_cselect_b32 s39, 1, 0','s_cselect_b32 s33, s33, s37','s_cselect_b32 s28, s28, s36']
        L+=wpart(0)+xpart(1)+wpart(1)+D.stamp_w(3,s.diag)
        for c in range(NCH):
            rem=1 if c<NCH-1 else 0
            L+=[f's_waitcnt vmcnt({rem*10})','s_barrier']
            if c+2<NCH: L+=xpart(c+2)+wpart(c+2)
        return L
    def gen(s):
        nm=s.name; T=s.T
        P=[f's_cmp_ge_u32 s2, 256', f's_cbranch_scc1 L_{nm}_end',
           's_load_dwordx4 s[48:51], s[0:1], 0',
           's_load_dwordx4 s[52:55], s[0:1], 16',
           's_load_dwordx2 s[56:57], s[0:1], 48',
           's_load_dwordx2 s[58:59], s[0:1], 64',
           's_load_dwordx2 s[4:5], s[0:1], 88']+D.start(s.diag)+[
           'v_lshrrev_b32 v1, 6, v0',
           's_and_b32 s16, s2, 7','s_lshr_b32 s17, s2, 3',
           'v_readfirstlane_b32 s3, v1',
           's_and_b32 s18, s16, 1','s_lshl_b32 s18, s18, 3','s_and_b32 s19, s17, 7','s_add_u32 s9, s18, s19',
           's_lshr_b32 s18, s16, 1','s_lshl_b32 s18, s18, 2','s_lshr_b32 s20, s17, 3','s_add_u32 s10, s18, s20',
           's_mul_i32 s20, s20, 5','s_add_u32 s20, s20, 1','s_lshr_b32 s20, s20, 1','s_add_u32 s11, s19, s20',
           's_sub_u32 s20, s11, 10','s_cmp_ge_u32 s11, 10','s_cselect_b32 s11, s20, s11']+([] if s.rot else ['s_mov_b32 s11, 0'])+[
           's_and_b32 s8, s3, 3',
           's_lshl_b32 s46, s9, 2','s_add_u32 s46, s46, s8',
           's_mov_b32 s14, 2621440','s_mov_b32 s15, 0x20000', f's_mov_b32 s6, {WS_BYTES}', 's_mov_b32 s7, 0x20000',
           's_mov_b32 s18, 819200','s_mov_b32 s24, 1280','s_mov_b32 s19, 0x20000','s_mov_b32 s23, 0x20000',
           's_waitcnt lgkmcnt(0)',
           's_mov_b32 s12, s48','s_and_b32 s13, s49, 0xffff',
           's_and_b32 s5, s5, 0xffff',
           's_cmp_lt_u32 s10, 4',
           's_cselect_b32 s16, s50, s56','s_cselect_b32 s17, s51, s57','s_cselect_b32 s18, s18, 2457600','s_cselect_b32 s24, s24, 3840',
           's_cselect_b32 s20, s52, s54','s_cselect_b32 s21, s53, s55',
           's_cselect_b32 s27, 0, 4','s_and_b32 s17, s17, 0xffff',
           's_mov_b32 s22, 25600',
           's_cmp_lt_u32 s10, 8',
           's_cselect_b32 s20, s20, s58','s_cselect_b32 s21, s21, s59','s_cselect_b32 s22, s22, 1280',
           's_and_b32 s21, s21, 0xffff',
           's_sub_u32 s27, s10, s27','s_mul_i32 s27, s27, 320',
           ]+D.stamp_w(1,s.diag)+['s_cmp_lt_u32 s3, 4', f's_cbranch_scc1 L_{nm}_compute']
        fin=D.finish(0,8,'s3',on=s.diag)
        exb=['s_and_b32 s25, s10, 3','s_lshl_b32 s26, s9, 2','s_add_u32 s25, s25, s26',
             's_mul_i32 s46, s25, 2560', f's_add_u32 s46, s46, {KVIMG}', 's_lshl_b32 s47, s25, 2', f's_add_u32 s47, s47, {KMAX}']
        Ld=s.loader()+['s_cmp_ge_u32 s10, 8',f's_cbranch_scc1 L_{nm}_ldend','s_barrier','s_cmp_lg_u32 s8, 0',f's_cbranch_scc1 L_{nm}_ldend']+exb
        C=[]
        C+=[f'v_and_b32 v{T}, 31, v0', f'v_bfe_u32 v{T+1}, v0, 5, 1',
            f'v_bfe_u32 v{T+2}, v0, 1, 3', f'v_xor_b32 v{T+2}, v{T+2}, v{T+1}',
            f'v_lshlrev_b32 v{T+3}, 7, v{T}', 's_lshl_b32 s25, s8, 12', f'v_add_u32 v{T+4}, s25, v{T+3}']
        for st in range(4):
            C+=[f'v_xor_b32 v{T+5}, {2*st}, v{T+2}', f'v_lshl_add_u32 v{s.xa[st]}, v{T+5}, 4, v{T+4}']
        C+=['s_and_b32 s25, s10, 3','s_lshl_b32 s26, s25, 12','s_lshl_b32 s28, s8, 1',
            f'v_add_u32 v{T+4}, s26, v{T+3}', f'v_xor_b32 v{T+5}, s28, v{T+2}', f'v_lshl_add_u32 v{s.xea}, v{T+5}, 4, v{T+4}']
        C+=[f'v_bfe_u32 v{T+3}, v0, 2, 2', f'v_lshl_add_u32 v{T+3}, v{T+1}, 3, v{T+3}',
            f'v_and_b32 v{T+4}, 3, v0', f'v_bfe_u32 v{T+5}, v0, 4, 1', f'v_lshl_add_u32 v{T+4}, v{T+5}, 2, v{T+4}',
            's_lshl_b32 s28, s8, 4', f'v_add_u32 v{T+5}, s28, v{T+3}', f'v_mul_u32_u24 v{T+5}, 40, v{T+5}',
            f'v_lshl_add_u32 v{s.ea}, v{T+4}, 3, v{T+5}', f'v_add_u32 v{s.ea}, {EOFF}, v{s.ea}',
            f'v_mul_u32_u24 v{T+3}, 320, v{T+3}', f'v_add_u32 v{T+3}, {WOFF}, v{T+3}',
            's_lshl_b32 s28, s11, 7', f's_add_u32 s28, s28, {GOFF}',
            f'v_lshlrev_b32 v{s.ga}, 4, v{T+1}', f'v_add_u32 v{s.ga}, s28, v{s.ga}']
        for t in range(5):
            for i in range(16): C.append(f'v_mov_b32 v{s.acc[t]+i}, 0')
        for i in range(16): C.append(f'v_mov_b32 v{s.accE+i}, 0')
        C.append(f'v_mov_b32 v{s.gacc}, 0')
        Cnat=[]; Cperm=[]
        for t in range(5):
            Cnat+=[f'v_add_u32 v{T+5}, {8*t}, v{T+4}', f'v_lshl_add_u32 v{s.wa[t]}, v{T+5}, 3, v{T+3}']
            Cperm+=[f'v_add_u32 v{T+5}, {8*t}, v{T+4}',
                    f'v_mul_u32_u24 v{T+6}, 6554, v{T+5}', f'v_lshrrev_b32 v{T+6}, 16, v{T+6}',
                    f'v_mul_u32_u24 v{T+6}, 10, v{T+6}', f'v_sub_u32 v{T+7}, v{T+5}, v{T+6}',
                    f'v_lshlrev_b32 v{T+7}, 2, v{T+7}',
                    f'v_lshrrev_b64 {vr(T+8,2)}, v{T+7}, s[60:61]', f'v_and_b32 v{T+8}, 15, v{T+8}',
                    f'v_add_u32 v{T+5}, v{T+6}, v{T+8}', f'v_lshl_add_u32 v{s.wa[t]}, v{T+5}, 3, v{T+3}']
        Cperm=['s_mov_b32 s60, 0x87653210','s_mov_b32 s61, 0x94']+Cperm
        C+=[f's_mov_b32 s44, {f2u(QSCALE):#x}', f's_mov_b32 s45, {f2u(QSCALE):#x}']
        disp=['s_cmp_lt_u32 s10, 4', f's_cbranch_scc1 L_{nm}_QK','s_cmp_lt_u32 s10, 8', f's_cbranch_scc1 L_{nm}_QV',
              's_cmp_lt_u32 s10, 12', f's_cbranch_scc1 L_{nm}_K']
        baseQ=['s_mul_i32 s41, s10, 655360','s_mul_i32 s42, s46, 1280','s_add_u32 s41, s41, s42',f's_add_u32 s41, s41, {QIMG}']
        baseK=['s_sub_u32 s42, s10, 8','s_lshl_b32 s42, s42, 3','s_add_u32 s42, s42, 1',
               's_mul_i32 s41, s42, 163840','s_mul_i32 s43, s46, 2560','s_add_u32 s41, s41, s43',f's_add_u32 s41, s41, {KVIMG}',
               's_lshl_b32 s40, s42, 8','s_lshl_b32 s43, s46, 2','s_add_u32 s40, s40, s43',f's_add_u32 s40, s40, {KMAX}']
        baseV=['s_sub_u32 s42, s10, 12','s_lshl_b32 s42, s42, 3','s_add_u32 s42, s42, 1',
               's_mul_i32 s41, s42, 163840','s_mul_i32 s43, s46, 2560','s_add_u32 s41, s41, s43',f's_add_u32 s41, s41, {KVIMG}']
        varV=Cnat+baseV+s.v_addr()+s.mainloop('V')+s.epi_v()+s.epi_gate()+[f'L_{nm}_end2:']+fin+['s_endpgm']
        varQK=Cperm+baseQ+s.mainloop('QK')+s.extra_write()+s.epi_qk(False)+fin+['s_endpgm']
        varQV=Cperm+baseQ+s.mainloop('QV')+s.extra_write()+s.epi_qk(False)+fin+['s_endpgm']
        varK=Cperm+baseK+s.mainloop('K')+s.epi_qk(True)+fin+['s_endpgm']
        out=[f'.globl {nm}','.p2align 8',f'.type {nm},@function',f'{nm}:']
        out+=P+Ld
        out+=['s_cmp_lt_u32 s10, 4',f's_cbranch_scc1 L_{nm}_exK']+s.extra_epi('QV')+[f's_branch L_{nm}_ldend',f'L_{nm}_exK:']+s.extra_epi('QK')
        out+=[f'L_{nm}_ldend:']+fin+[f'L_{nm}_end:','s_endpgm']
        out+=[f'L_{nm}_compute:']+C+disp+varV+[f'L_{nm}_QK:']+varQK+[f'L_{nm}_QV:']+varQV+[f'L_{nm}_K:']+varK
        probs=[]
        for n,v in(('V',varV),('QK',varQK),('QV',varQV),('K',varK)): probs+=check(P+C+v,nm+'/'+n)
        probs+=check(P+Ld+s.extra_epi('QV'),nm+'/ldE1')+check(P+Ld+s.extra_epi('QK'),nm+'/ldE2')
        probs=[p for p in probs if 'lgkmcnt overflow' not in p]
        kd=f""".amdhsa_kernel {nm}
  .amdhsa_next_free_vgpr {s.nv}
  .amdhsa_next_free_sgpr 102
  .amdhsa_accum_offset {(s.nv+3)//4*4}
  .amdhsa_group_segment_fixed_size 0
  .amdhsa_kernarg_size 96
  .amdhsa_user_sgpr_count 2
  .amdhsa_user_sgpr_kernarg_segment_ptr 1
  .amdhsa_system_sgpr_workgroup_id_x 1
.end_amdhsa_kernel"""
        launch=f'; @launch kernel={nm} grid=(256,1,1) block=(512,1,1) lds={GOFF+2560}'
        return out,kd,launch,probs
if __name__=='__main__':
    k=K1()
    out,kd,launch,probs=k.gen()
    print(k.nv,len(out))
    for p in probs[:40]: print(p)
```
